```python
import torch

def _softmax(x, axis=-1):
    return torch.softmax(x, dim=axis)
def _gelu(x):
    return torch.nn.functional.gelu(x, approximate="tanh")
def _silu(x):
    return torch.nn.functional.silu(x)
def _sigmoid(x):
    return torch.sigmoid(x)
def _layernorm(x, axis=-1, eps=1e-5):
    m = x.mean(dim=axis, keepdim=True)
    v = x.var(dim=axis, keepdim=True, unbiased=False)
    return (x - m) / torch.sqrt(v + eps)
def _scatter_add(tgt, idx, src, axis=0):
    return tgt.clone().index_add_(axis, idx, src)
def _segment_sum(src, seg, n):
    out = torch.zeros((n,) + src.shape[1:], dtype=src.dtype)
    return out.index_add_(0, seg, src)
def _pad(x, pw):
    flat = tuple(v for pair in reversed(pw) for v in pair)
    return torch.nn.functional.pad(x, flat)

kernel_name = 'standalone__gqa_softmax__decode'

def setup_inputs():

    _w = (lambda a: (lambda t: t.to(torch.bfloat16) if t.is_floating_point() else t)(torch.as_tensor(a)))
    B, Hq, Hkv, Sq, Sk, D = 2, 32, 32, 1, 4096, 128
    return {
        "q": _w((lambda *s: torch.randn(*s, dtype=torch.bfloat16) * 0.8)(B, Hq, Sq, D)),
        "k": _w((lambda *s: torch.randn(*s, dtype=torch.bfloat16) * 0.8)(B, Hkv, Sk, D)),
        "v": _w((lambda *s: torch.randn(*s, dtype=torch.bfloat16) * 0.05)(B, Hkv, Sk, D)),
    }

def reference(q, k, v):
    B, Hq, Sq, D = q.shape
    Hkv = k.shape[1]
    rep = Hq // Hkv
    k = (lambda x, n, axis: torch.repeat_interleave(x, n, dim=axis))(k, rep, axis=1)
    v = (lambda x, n, axis: torch.repeat_interleave(x, n, dim=axis))(v, rep, axis=1)
    scale = D ** -0.5
    scores = torch.einsum("bhqd,bhkd->bhqk", q, k) * scale
    p = _softmax(scores, axis=-1)
    return torch.einsum("bhqk,bhkd->bhqd", p, v)
```

```python
import sys, argparse

HEADER = """\
"""

NAME = "standalone__gqa_softmax__decode"

class Asm:
    def __init__(self):
        self.lines = []
    def __call__(self, s):
        for l in s.strip("\n").split("\n"):
            self.lines.append("    " + l.strip())
    def label(self, s):
        self.lines.append(s + ":")
    def text(self):
        return "\n".join(self.lines) + "\n"

def gen(S=4, W=8, R=32, pol="", headmajor=True, interleave=False, lds_pad=0):
    NH = 64
    SK = 4096
    KW = SK // (S * W)
    NL = KW // 4
    assert NL % 16 == 0
    NG = NL // 16
    NWG = NH * S
    a = Asm()
    V_TID = 0
    V_OFF = 1
    V_Q = 2
    V_T = 6
    V_S = V_T + 16
    V_ACC = V_S + 4 * NG
    V_U = V_ACC + 8
    V_M = V_U + 8
    V_L = V_M + 1
    V_X = V_L + 1
    V_RING = (V_X + 4 + 3) // 4 * 4
    NV = V_RING + 4 * R
    assert NV <= 256, NV
    def ring(i, e=None):
        b = V_RING + 4 * (i % R)
        return f"v[{b}:{b+3}]" if e is None else f"v{b+e}"
    S_HEAD, S_SPLIT, S_WAVE, S_T0, S_T1, S_C = 16, 17, 18, 19, 20, 21
    S_KB, S_VB = 22, 24
    a(f"""
    s_cmp_ge_u32 s2, {NWG}
    s_cbranch_scc1 L_end
    s_load_dwordx4 s[4:7], s[0:1], 0
    s_load_dwordx4 s[8:11], s[0:1], 16
    s_load_dwordx4 s[12:15], s[0:1], 32
    v_lshrrev_b32 v{V_X}, 6, v0
    v_and_b32 v{V_OFF}, 63, v0
    v_readfirstlane_b32 s{S_WAVE}, v{V_X}
    v_lshlrev_b32 v{V_OFF}, 4, v{V_OFF}
    """)
    if headmajor:
        sh = S.bit_length() - 1
        a(f"s_lshr_b32 s{S_HEAD}, s2, {sh}")
        a(f"s_and_b32 s{S_SPLIT}, s2, {S-1}")
    else:
        a(f"s_and_b32 s{S_HEAD}, s2, 63")
        a(f"s_lshr_b32 s{S_SPLIT}, s2, 6")
    a(f"""
    v_and_b32 v{V_X+1}, 0xf0, v{V_OFF}
    s_lshl_b32 s{S_T0}, s{S_HEAD}, 8
    v_add_u32 v{V_X+1}, s{S_T0}, v{V_X+1}
    """)
    a(f"""
    s_mul_i32 s{S_T0}, s{S_SPLIT}, {W}
    s_add_u32 s{S_T0}, s{S_T0}, s{S_WAVE}
    s_mul_i32 s{S_T0}, s{S_T0}, {KW*256}
    s_lshl_b32 s{S_T1}, s{S_HEAD}, 20
    s_add_u32 s{S_T0}, s{S_T0}, s{S_T1}
    s_mov_b32 s{S_C}, 0x3e0293ee
    s_waitcnt lgkmcnt(0)
    global_load_dwordx4 v[{V_Q}:{V_Q+3}], v{V_X+1}, s[4:5]
    s_add_u32 s{S_KB}, s6, s{S_T0}
    s_addc_u32 s{S_KB+1}, s7, 0
    s_add_u32 s{S_VB}, s8, s{S_T0}
    s_addc_u32 s{S_VB+1}, s9, 0
    """)
    total = 2 * NL
    issued = [0]
    def issue():
        i = issued[0]
        if i >= total: return
        isK = i < NL
        j = i if isK else i - NL
        base = S_KB if isK else S_VB
        if j and j % 4 == 0:
            a(f"s_add_u32 s{base}, s{base}, 4096")
            a(f"s_addc_u32 s{base+1}, s{base+1}, 0")
        a(f"global_load_dwordx4 {ring(i)}, v{V_OFF}, s[{base}:{base+1}] offset:{(j%4)*1024}{pol}")
        issued[0] += 1
    for i in range(min(R, total)):
        issue()
    def wait_for(i):
        n = issued[0] - 1 - i
        a(f"s_waitcnt vmcnt({n})")
    for g in range(NG):
        for jj in range(16):
            i = g * 16 + jj
            wait_for(i)
            t = V_T + jj
            a(f"v_dot2_f32_bf16 v{t}, {ring(i,0)}, v{V_Q}, 0")
            a(f"v_dot2_f32_bf16 v{t}, {ring(i,1)}, v{V_Q+1}, v{t}")
            a(f"v_dot2_f32_bf16 v{t}, {ring(i,2)}, v{V_Q+2}, v{t}")
            a(f"v_dot2_f32_bf16 v{t}, {ring(i,3)}, v{V_Q+3}, v{t}")
            issue()
        a("s_nop 2")
        for i in range(8):
            a(f"v_add_f32_dpp v{V_T+i}, v{V_T+i}, v{V_T+i} row_ror:8 row_mask:0xf bank_mask:0x3")
        for i in range(8):
            a(f"v_add_f32_dpp v{V_T+i}, v{V_T+i+8}, v{V_T+i+8} row_ror:8 row_mask:0xf bank_mask:0xc")
        for i in range(4):
            a(f"v_add_f32_dpp v{V_T+i}, v{V_T+i}, v{V_T+i} row_half_mirror row_mask:0xf bank_mask:0x5")
        for i in range(4):
            a(f"v_add_f32_dpp v{V_T+i}, v{V_T+i+4}, v{V_T+i+4} row_half_mirror row_mask:0xf bank_mask:0xa")
        for i in range(4):
            a(f"v_add_f32_dpp v{V_T+i}, v{V_T+i}, v{V_T+i} quad_perm:[1,0,3,2] row_mask:0xf bank_mask:0xf")
        for i in range(4):
            a(f"v_add_f32_dpp v{V_T+i}, v{V_T+i}, v{V_T+i} quad_perm:[2,3,0,1] row_mask:0xf bank_mask:0xf")
        for i in range(4):
            a(f"v_mul_f32 v{V_S+4*g+i}, s{S_C}, v{V_T+i}")
    n = 4 * NG
    a(f"v_max_f32 v{V_M}, v{V_S}, v{V_S+1}")
    k = 2
    while k < n:
        a(f"v_max3_f32 v{V_M}, v{V_M}, v{V_S+k}, v{V_S+k+1}")
        k += 2
    a("s_nop 1")
    a(f"v_max_f32_dpp v{V_M}, v{V_M}, v{V_M} row_ror:4 row_mask:0xf bank_mask:0xf")
    a("s_nop 1")
    a(f"v_max_f32_dpp v{V_M}, v{V_M}, v{V_M} row_ror:8 row_mask:0xf bank_mask:0xf")
    a(f"""
    s_nop 0
    v_mov_b32 v{V_X}, v{V_M}
    s_nop 1
    v_permlane16_swap_b32 v{V_M}, v{V_X}
    s_nop 0
    v_max_f32 v{V_M}, v{V_M}, v{V_X}
    s_nop 0
    v_mov_b32 v{V_X}, v{V_M}
    s_nop 1
    v_permlane32_swap_b32 v{V_M}, v{V_X}
    s_nop 0
    v_max_f32 v{V_M}, v{V_M}, v{V_X}
    """)
    for i in range(n):
        a(f"v_sub_f32 v{V_S+i}, v{V_S+i}, v{V_M}")
    for i in range(n):
        a(f"v_exp_f32 v{V_S+i}, v{V_S+i}")
    a("s_nop 0")
    a(f"v_add_f32 v{V_L}, v{V_S}, v{V_S+1}")
    for i in range(2, n):
        a(f"v_add_f32 v{V_L}, v{V_L}, v{V_S+i}")
    for e in range(8):
        a(f"v_mov_b32 v{V_ACC+e}, 0")
    a(f"v_add_f32_dpp v{V_L}, v{V_L}, v{V_L} row_ror:4 row_mask:0xf bank_mask:0xf")
    a("s_nop 1")
    a(f"v_add_f32_dpp v{V_L}, v{V_L}, v{V_L} row_ror:8 row_mask:0xf bank_mask:0xf")
    a(f"""
    s_nop 0
    v_mov_b32 v{V_X}, v{V_L}
    s_nop 1
    v_permlane16_swap_b32 v{V_L}, v{V_X}
    s_nop 0
    v_add_f32 v{V_L}, v{V_L}, v{V_X}
    s_nop 0
    v_mov_b32 v{V_X}, v{V_L}
    s_nop 1
    v_permlane32_swap_b32 v{V_L}, v{V_X}
    s_nop 0
    v_add_f32 v{V_L}, v{V_L}, v{V_X}
    """)
    for j in range(NL):
        i = NL + j
        g, jj = divmod(j, 16)
        preg = V_S + 4 * g + (jj & 3)
        b = jj >> 2
        wait_for(i)
        for e in range(4):
            a(f"v_lshlrev_b32 v{V_U+2*e}, 16, {ring(i,e)}")
            a(f"v_and_b32 v{V_U+2*e+1}, 0xffff0000, {ring(i,e)}")
        issue()
        for e in range(8):
            a(f"v_fmac_f32_dpp v{V_ACC+e}, v{preg}, v{V_U+e} row_newbcast:{4*b} row_mask:0xf bank_mask:0xf")
    a("s_nop 1")
    for e in range(4):
        a(f"v_permlane32_swap_b32 v{V_ACC+e}, v{V_ACC+e+4}")
    a("s_nop 0")
    for e in range(4):
        a(f"v_add_f32 v{V_ACC+e}, v{V_ACC+e}, v{V_ACC+e+4}")
    a("s_nop 1")
    for e in range(2):
        a(f"v_permlane16_swap_b32 v{V_ACC+e}, v{V_ACC+e+2}")
    a("s_nop 0")
    AC = V_U
    assert AC % 2 == 0
    a(f"v_add_f32 v{AC}, v{V_ACC}, v{V_ACC+2}")
    a(f"v_add_f32 v{AC+1}, v{V_ACC+1}, v{V_ACC+3}")
    LDS_ML = W * 512
    a(f"""
    v_and_b32 v{V_X}, 15, v0
    v_lshlrev_b32 v{V_X}, 5, v{V_X}
    v_bfe_u32 v{V_X+1}, v0, 4, 2
    v_lshl_add_u32 v{V_X}, v{V_X+1}, 3, v{V_X}
    s_lshl_b32 s{S_T0}, s{S_WAVE}, 9
    v_add_u32 v{V_X}, s{S_T0}, v{V_X}
    ds_write_b64 v{V_X}, v[{AC}:{AC+1}]
    s_lshl_b32 s{S_T0}, s{S_WAVE}, 3
    s_add_u32 s{S_T0}, s{S_T0}, {LDS_ML}
    v_mov_b32 v{V_X+1}, s{S_T0}
    v_mov_b32 v{AC+2}, v{V_M}
    v_mov_b32 v{AC+3}, v{V_L}
    ds_write_b64 v{V_X+1}, v[{AC+2}:{AC+3}]
    s_waitcnt lgkmcnt(0)
    s_barrier
    s_cmp_lg_u32 s{S_WAVE}, 0
    s_cbranch_scc1 L_end
    """)
    B = V_RING
    a(f"v_lshlrev_b32 v{V_X}, 3, v0")
    a(f"v_mov_b32 v{V_X+1}, {LDS_ML}")
    for w in range(W):
        a(f"ds_read_b64 v[{B+2*W+2*w}:{B+2*W+2*w+1}], v{V_X+1} offset:{8*w}")
    for w in range(W):
        a(f"ds_read_b64 v[{B+2*w}:{B+2*w+1}], v{V_X} offset:{512*w}")
    a(f"s_waitcnt lgkmcnt({W})")
    ML = B + 2 * W
    def combine(nparts, OB, ML, with_final):
        a(f"v_max_f32 v{V_M}, v{ML}, v{ML+2}")
        for w in range(2, nparts):
            a(f"v_max_f32 v{V_M}, v{V_M}, v{ML+2*w}")
        for w in range(nparts):
            a(f"v_sub_f32 v{ML+2*w}, v{ML+2*w}, v{V_M}")
        for w in range(nparts):
            a(f"v_exp_f32 v{ML+2*w}, v{ML+2*w}")
        a("s_nop 0")
        a(f"v_mul_f32 v{V_L}, v{ML}, v{ML+1}")
        for w in range(1, nparts):
            a(f"v_fmac_f32 v{V_L}, v{ML+2*w}, v{ML+2*w+1}")
        a("s_waitcnt lgkmcnt(0) vmcnt(0)")
        a(f"v_mul_f32 v{AC}, v{ML}, v{OB}")
        a(f"v_mul_f32 v{AC+1}, v{ML}, v{OB+1}")
        for w in range(1, nparts):
            a(f"v_fmac_f32 v{AC}, v{ML+2*w}, v{OB+2*w}")
            a(f"v_fmac_f32 v{AC+1}, v{ML+2*w}, v{OB+2*w+1}")
    combine(W, B, ML, False)
    a(f"""
    s_mul_i32 s{S_T0}, s{S_HEAD}, {S}
    s_add_u32 s{S_T1}, s{S_T0}, s{S_SPLIT}
    s_lshl_b32 s{S_T1}, s{S_T1}, 10
    v_add_u32 v{V_X+1}, s{S_T1}, v{V_X}
    global_store_dwordx2 v{V_X+1}, v[{AC}:{AC+1}], s[14:15] sc1
    v_mov_b32 v{AC+2}, v{V_M}
    v_mov_b32 v{AC+3}, v{V_L}
    v_mov_b32 v{V_X+2}, s{S_T1}
    s_mov_b64 exec, 1
    global_store_dwordx2 v{V_X+2}, v[{AC+2}:{AC+3}], s[14:15] offset:512 sc1
    s_lshl_b32 s{S_T1}, s{S_HEAD}, 2
    v_mov_b32 v{V_X+2}, s{S_T1}
    v_mov_b32 v{V_X+3}, 1
    s_waitcnt vmcnt(0)
    global_atomic_add v{V_X+3}, v{V_X+2}, v{V_X+3}, s[12:13] sc0
    s_waitcnt vmcnt(0)
    v_readfirstlane_b32 s{S_T1}, v{V_X+3}
    s_mov_b64 exec, -1
    s_cmp_lg_u32 s{S_T1}, {S-1}
    s_cbranch_scc1 L_end
    s_lshl_b32 s{S_T0}, s{S_T0}, 10
    v_add_u32 v{V_X+1}, s{S_T0}, v{V_X}
    v_mov_b32 v{V_X+2}, s{S_T0}
    """)
    ML2 = B + 2 * S
    for s in range(S):
        a(f"global_load_dwordx2 v[{ML2+2*s}:{ML2+2*s+1}], v{V_X+2}, s[14:15] offset:{1024*s+512} sc1" if 1024*s+512 < 4096 else "XXX")
    for s in range(S):
        a(f"global_load_dwordx2 v[{B+2*s}:{B+2*s+1}], v{V_X+1}, s[14:15] offset:{1024*s} sc1")
    a(f"s_waitcnt vmcnt({S})")
    combine(S, B, ML2, True)
    a(f"""
    v_rcp_f32 v{V_L}, v{V_L}
    s_nop 0
    v_mul_f32 v{AC}, v{AC}, v{V_L}
    v_mul_f32 v{AC+1}, v{AC+1}, v{V_L}
    v_cvt_pk_bf16_f32 v{AC}, v{AC}, v{AC+1}
    s_lshl_b32 s{S_T0}, s{S_HEAD}, 8
    v_lshlrev_b32 v{V_X}, 2, v0
    v_add_u32 v{V_X}, s{S_T0}, v{V_X}
    global_store_dword v{V_X}, v{AC}, s[10:11]
    """)
    a.label("L_end")
    a("s_endpgm")
    lds = W * 512 + W * 8 + lds_pad
    nv = (NV + 7) // 8 * 8
    out = HEADER + f"; @launch grid=({NWG},1,1) block=({64*W},1,1) lds={lds}\n"
    out += f""".amdgcn_target "amdgcn-amd-amdhsa--gfx950"
.text
.globl {NAME}_kernel
.p2align 8
.type {NAME}_kernel,@function
{NAME}_kernel:
"""
    out += a.text()
    out += f""".section .rodata,"a"
.p2align 6
.amdhsa_kernel {NAME}_kernel
  .amdhsa_next_free_vgpr {nv}
  .amdhsa_next_free_sgpr 32
  .amdhsa_accum_offset {nv}
  .amdhsa_group_segment_fixed_size 0
  .amdhsa_kernarg_size 48
  .amdhsa_user_sgpr_count 2
  .amdhsa_user_sgpr_kernarg_segment_ptr 1
  .amdhsa_system_sgpr_workgroup_id_x 1
  .amdhsa_float_denorm_mode_32 3
.end_amdhsa_kernel
"""
    return out

if __name__ == "__main__":
    p = argparse.ArgumentParser()
    p.add_argument("-S", type=int, default=4)
    p.add_argument("-W", type=int, default=8)
    p.add_argument("-R", type=int, default=32)
    p.add_argument("--pol", default="")
    p.add_argument("--splitmajor", action="store_true")
    p.add_argument("-o", default="-")
    args = p.parse_args()
    pol = (" " + args.pol) if args.pol else ""
    txt = gen(args.S, args.W, args.R, pol, not args.splitmajor)
    if args.o == "-": sys.stdout.write(txt)
    else: open(args.o, "w").write(txt)
```

```python
import sys, argparse

HEADER = """\
"""

NAME = "standalone__gqa_softmax__decode"

class Asm:
    def __init__(self):
        self.lines = []
    def __call__(self, s):
        for l in s.strip("\n").split("\n"):
            self.lines.append("    " + l.strip())
    def label(self, s):
        self.lines.append(s + ":")
    def text(self):
        return "\n".join(self.lines) + "\n"

def gen(S=4, W=8, R=32, pol="", headmajor=True, interleave=False, lds_pad=0):
    NH = 64
    SK = 4096
    KW = SK // (S * W)
    NL = KW // 4
    assert NL % 16 == 0
    NG = NL // 16
    NWG = NH * S
    a = Asm()
    V_TID = 0
    V_OFF = 1
    V_Q = 2
    V_T = 6
    V_S = V_T + 16
    V_ACC = V_S + 4 * NG
    V_U = V_ACC + 8
    V_M = V_U + 8
    V_L = V_M + 1
    V_X = V_L + 1
    V_RING = (V_X + 4 + 3) // 4 * 4
    NV = V_RING + 4 * R
    assert NV <= 256, NV
    def ring(i, e=None):
        b = V_RING + 4 * (i % R)
        return f"v[{b}:{b+3}]" if e is None else f"v{b+e}"
    S_HEAD, S_SPLIT, S_WAVE, S_T0, S_T1, S_C = 16, 17, 18, 19, 20, 21
    S_KB, S_VB = 22, 24
    a(f"""
    s_cmp_ge_u32 s2, {NWG}
    s_cbranch_scc1 L_end
    s_load_dwordx4 s[4:7], s[0:1], 0
    s_load_dwordx4 s[8:11], s[0:1], 16
    s_load_dwordx4 s[12:15], s[0:1], 32
    v_lshrrev_b32 v{V_X}, 6, v0
    v_and_b32 v{V_OFF}, 63, v0
    v_readfirstlane_b32 s{S_WAVE}, v{V_X}
    v_lshlrev_b32 v{V_OFF}, 4, v{V_OFF}
    """)
    if headmajor:
        sh = S.bit_length() - 1
        a(f"s_lshr_b32 s{S_HEAD}, s2, {sh}")
        a(f"s_and_b32 s{S_SPLIT}, s2, {S-1}")
    else:
        a(f"s_and_b32 s{S_HEAD}, s2, 63")
        a(f"s_lshr_b32 s{S_SPLIT}, s2, 6")
    a(f"""
    v_and_b32 v{V_X+1}, 0xf0, v{V_OFF}
    s_lshl_b32 s{S_T0}, s{S_HEAD}, 8
    v_add_u32 v{V_X+1}, s{S_T0}, v{V_X+1}
    """)
    a(f"""
    s_mul_i32 s{S_T0}, s{S_SPLIT}, {W}
    s_add_u32 s{S_T0}, s{S_T0}, s{S_WAVE}
    s_mul_i32 s{S_T0}, s{S_T0}, {KW*256}
    s_lshl_b32 s{S_T1}, s{S_HEAD}, 20
    s_add_u32 s{S_T0}, s{S_T0}, s{S_T1}
    s_mov_b32 s{S_C}, 0x3e0293ee
    s_waitcnt lgkmcnt(0)
    global_load_dwordx4 v[{V_Q}:{V_Q+3}], v{V_X+1}, s[4:5]
    s_add_u32 s{S_KB}, s6, s{S_T0}
    s_addc_u32 s{S_KB+1}, s7, 0
    s_add_u32 s{S_VB}, s8, s{S_T0}
    s_addc_u32 s{S_VB+1}, s9, 0
    """)
    total = 2 * NL
    issued = [0]
    def issue():
        i = issued[0]
        if i >= total: return
        isK = i < NL
        j = i if isK else i - NL
        base = S_KB if isK else S_VB
        if j and j % 4 == 0:
            a(f"s_add_u32 s{base}, s{base}, 4096")
            a(f"s_addc_u32 s{base+1}, s{base+1}, 0")
        a(f"global_load_dwordx4 {ring(i)}, v{V_OFF}, s[{base}:{base+1}] offset:{(j%4)*1024}{pol}")
        issued[0] += 1
    for i in range(min(R, total)):
        issue()
    def wait_for(i):
        n = issued[0] - 1 - i
        a(f"s_waitcnt vmcnt({n})")
    for g in range(NG):
        for jj in range(16):
            i = g * 16 + jj
            wait_for(i)
            t = V_T + jj
            a(f"v_dot2_f32_bf16 v{t}, {ring(i,0)}, v{V_Q}, 0")
            a(f"v_dot2_f32_bf16 v{t}, {ring(i,1)}, v{V_Q+1}, v{t}")
            a(f"v_dot2_f32_bf16 v{t}, {ring(i,2)}, v{V_Q+2}, v{t}")
            a(f"v_dot2_f32_bf16 v{t}, {ring(i,3)}, v{V_Q+3}, v{t}")
            issue()
        a("s_nop 2")
        for i in range(8):
            a(f"v_add_f32_dpp v{V_T+i}, v{V_T+i}, v{V_T+i} row_ror:8 row_mask:0xf bank_mask:0x3")
        for i in range(8):
            a(f"v_add_f32_dpp v{V_T+i}, v{V_T+i+8}, v{V_T+i+8} row_ror:8 row_mask:0xf bank_mask:0xc")
        for i in range(4):
            a(f"v_add_f32_dpp v{V_T+i}, v{V_T+i}, v{V_T+i} row_half_mirror row_mask:0xf bank_mask:0x5")
        for i in range(4):
            a(f"v_add_f32_dpp v{V_T+i}, v{V_T+i+4}, v{V_T+i+4} row_half_mirror row_mask:0xf bank_mask:0xa")
        for i in range(4):
            a(f"v_add_f32_dpp v{V_T+i}, v{V_T+i}, v{V_T+i} quad_perm:[1,0,3,2] row_mask:0xf bank_mask:0xf")
        for i in range(4):
            a(f"v_add_f32_dpp v{V_T+i}, v{V_T+i}, v{V_T+i} quad_perm:[2,3,0,1] row_mask:0xf bank_mask:0xf")
        for i in range(4):
            a(f"v_mul_f32 v{V_S+4*g+i}, s{S_C}, v{V_T+i}")
    n = 4 * NG
    a(f"v_max_f32 v{V_M}, v{V_S}, v{V_S+1}")
    k = 2
    while k < n:
        a(f"v_max3_f32 v{V_M}, v{V_M}, v{V_S+k}, v{V_S+k+1}")
        k += 2
    a("s_nop 1")
    a(f"v_max_f32_dpp v{V_M}, v{V_M}, v{V_M} row_ror:4 row_mask:0xf bank_mask:0xf")
    a("s_nop 1")
    a(f"v_max_f32_dpp v{V_M}, v{V_M}, v{V_M} row_ror:8 row_mask:0xf bank_mask:0xf")
    a(f"""
    s_nop 0
    v_mov_b32 v{V_X}, v{V_M}
    s_nop 1
    v_permlane16_swap_b32 v{V_M}, v{V_X}
    s_nop 0
    v_max_f32 v{V_M}, v{V_M}, v{V_X}
    s_nop 0
    v_mov_b32 v{V_X}, v{V_M}
    s_nop 1
    v_permlane32_swap_b32 v{V_M}, v{V_X}
    s_nop 0
    v_max_f32 v{V_M}, v{V_M}, v{V_X}
    """)
    for i in range(n):
        a(f"v_sub_f32 v{V_S+i}, v{V_S+i}, v{V_M}")
    for i in range(n):
        a(f"v_exp_f32 v{V_S+i}, v{V_S+i}")
    a("s_nop 0")
    a(f"v_add_f32 v{V_L}, v{V_S}, v{V_S+1}")
    for i in range(2, n):
        a(f"v_add_f32 v{V_L}, v{V_L}, v{V_S+i}")
    for e in range(8):
        a(f"v_mov_b32 v{V_ACC+e}, 0")
    a(f"v_add_f32_dpp v{V_L}, v{V_L}, v{V_L} row_ror:4 row_mask:0xf bank_mask:0xf")
    a("s_nop 1")
    a(f"v_add_f32_dpp v{V_L}, v{V_L}, v{V_L} row_ror:8 row_mask:0xf bank_mask:0xf")
    a(f"""
    s_nop 0
    v_mov_b32 v{V_X}, v{V_L}
    s_nop 1
    v_permlane16_swap_b32 v{V_L}, v{V_X}
    s_nop 0
    v_add_f32 v{V_L}, v{V_L}, v{V_X}
    s_nop 0
    v_mov_b32 v{V_X}, v{V_L}
    s_nop 1
    v_permlane32_swap_b32 v{V_L}, v{V_X}
    s_nop 0
    v_add_f32 v{V_L}, v{V_L}, v{V_X}
    """)
    for j in range(NL):
        i = NL + j
        g, jj = divmod(j, 16)
        preg = V_S + 4 * g + (jj & 3)
        b = jj >> 2
        wait_for(i)
        for e in range(4):
            a(f"v_lshlrev_b32 v{V_U+2*e}, 16, {ring(i,e)}")
            a(f"v_and_b32 v{V_U+2*e+1}, 0xffff0000, {ring(i,e)}")
        issue()
        for e in range(8):
            a(f"v_fmac_f32_dpp v{V_ACC+e}, v{preg}, v{V_U+e} row_newbcast:{4*b} row_mask:0xf bank_mask:0xf")
    a("s_nop 1")
    for e in range(4):
        a(f"v_permlane32_swap_b32 v{V_ACC+e}, v{V_ACC+e+4}")
    a("s_nop 0")
    for e in range(4):
        a(f"v_add_f32 v{V_ACC+e}, v{V_ACC+e}, v{V_ACC+e+4}")
    a("s_nop 1")
    for e in range(2):
        a(f"v_permlane16_swap_b32 v{V_ACC+e}, v{V_ACC+e+2}")
    a("s_nop 0")
    AC = V_U
    assert AC % 2 == 0
    a(f"v_add_f32 v{AC}, v{V_ACC}, v{V_ACC+2}")
    a(f"v_add_f32 v{AC+1}, v{V_ACC+1}, v{V_ACC+3}")
    LDS_ML = W * 512
    a(f"""
    v_and_b32 v{V_X}, 15, v0
    v_lshlrev_b32 v{V_X}, 5, v{V_X}
    v_bfe_u32 v{V_X+1}, v0, 4, 2
    v_lshl_add_u32 v{V_X}, v{V_X+1}, 3, v{V_X}
    s_lshl_b32 s{S_T0}, s{S_WAVE}, 9
    v_add_u32 v{V_X}, s{S_T0}, v{V_X}
    ds_write_b64 v{V_X}, v[{AC}:{AC+1}]
    s_lshl_b32 s{S_T0}, s{S_WAVE}, 3
    s_add_u32 s{S_T0}, s{S_T0}, {LDS_ML}
    v_mov_b32 v{V_X+1}, s{S_T0}
    v_mov_b32 v{AC+2}, v{V_M}
    v_mov_b32 v{AC+3}, v{V_L}
    ds_write_b64 v{V_X+1}, v[{AC+2}:{AC+3}]
    s_waitcnt lgkmcnt(0)
    s_barrier
    s_cmp_lg_u32 s{S_WAVE}, 0
    s_cbranch_scc1 L_end
    """)
    B = V_RING
    a(f"v_lshlrev_b32 v{V_X}, 3, v0")
    a(f"v_mov_b32 v{V_X+1}, {LDS_ML}")
    for w in range(W):
        a(f"ds_read_b64 v[{B+2*W+2*w}:{B+2*W+2*w+1}], v{V_X+1} offset:{8*w}")
    for w in range(W):
        a(f"ds_read_b64 v[{B+2*w}:{B+2*w+1}], v{V_X} offset:{512*w}")
    a(f"s_waitcnt lgkmcnt({min(W,15)})")
    ML = B + 2 * W
    def combine(nparts, OB, ML, with_final):
        a(f"v_max_f32 v{V_M}, v{ML}, v{ML+2}")
        for w in range(2, nparts):
            a(f"v_max_f32 v{V_M}, v{V_M}, v{ML+2*w}")
        for w in range(nparts):
            a(f"v_sub_f32 v{ML+2*w}, v{ML+2*w}, v{V_M}")
        for w in range(nparts):
            a(f"v_exp_f32 v{ML+2*w}, v{ML+2*w}")
        a("s_nop 0")
        a(f"v_mul_f32 v{V_L}, v{ML}, v{ML+1}")
        for w in range(1, nparts):
            a(f"v_fmac_f32 v{V_L}, v{ML+2*w}, v{ML+2*w+1}")
        a("s_waitcnt lgkmcnt(0) vmcnt(0)")
        a(f"v_mul_f32 v{AC}, v{ML}, v{OB}")
        a(f"v_mul_f32 v{AC+1}, v{ML}, v{OB+1}")
        for w in range(1, nparts):
            a(f"v_fmac_f32 v{AC}, v{ML+2*w}, v{OB+2*w}")
            a(f"v_fmac_f32 v{AC+1}, v{ML+2*w}, v{OB+2*w+1}")
    combine(W, B, ML, False)
    a(f"""
    s_mul_i32 s{S_T0}, s{S_HEAD}, {S}
    s_add_u32 s{S_T1}, s{S_T0}, s{S_SPLIT}
    s_lshl_b32 s{S_T1}, s{S_T1}, 10
    v_add_u32 v{V_X+1}, s{S_T1}, v{V_X}
    global_store_dwordx2 v{V_X+1}, v[{AC}:{AC+1}], s[14:15] sc1
    v_mov_b32 v{AC+2}, v{V_M}
    v_mov_b32 v{AC+3}, v{V_L}
    v_mov_b32 v{V_X+2}, s{S_T1}
    s_mov_b64 exec, 1
    global_store_dwordx2 v{V_X+2}, v[{AC+2}:{AC+3}], s[14:15] offset:512 sc1
    s_lshl_b32 s{S_T1}, s{S_HEAD}, 2
    v_mov_b32 v{V_X+2}, s{S_T1}
    v_mov_b32 v{V_X+3}, 1
    s_waitcnt vmcnt(0)
    global_atomic_add v{V_X+3}, v{V_X+2}, v{V_X+3}, s[12:13] sc0
    s_waitcnt vmcnt(0)
    v_readfirstlane_b32 s{S_T1}, v{V_X+3}
    s_mov_b64 exec, -1
    s_cmp_lg_u32 s{S_T1}, {S-1}
    s_cbranch_scc1 L_end
    s_lshl_b32 s{S_T0}, s{S_T0}, 10
    v_add_u32 v{V_X+1}, s{S_T0}, v{V_X}
    v_mov_b32 v{V_X+2}, s{S_T0}
    """)
    ML2 = B + 2 * S
    for s in range(S):
        if s and s % 4 == 0:
            a(f"v_add_u32 v{V_X+2}, 4096, v{V_X+2}")
        a(f"global_load_dwordx2 v[{ML2+2*s}:{ML2+2*s+1}], v{V_X+2}, s[14:15] offset:{1024*(s%4)+512} sc1")
    for s in range(S):
        if s and s % 4 == 0:
            a(f"v_add_u32 v{V_X+1}, 4096, v{V_X+1}")
        a(f"global_load_dwordx2 v[{B+2*s}:{B+2*s+1}], v{V_X+1}, s[14:15] offset:{1024*(s%4)} sc1")
    a(f"s_waitcnt vmcnt({S})")
    combine(S, B, ML2, True)
    a(f"""
    v_rcp_f32 v{V_L}, v{V_L}
    s_nop 0
    v_mul_f32 v{AC}, v{AC}, v{V_L}
    v_mul_f32 v{AC+1}, v{AC+1}, v{V_L}
    v_cvt_pk_bf16_f32 v{AC}, v{AC}, v{AC+1}
    s_lshl_b32 s{S_T0}, s{S_HEAD}, 8
    v_lshlrev_b32 v{V_X}, 2, v0
    v_add_u32 v{V_X}, s{S_T0}, v{V_X}
    global_store_dword v{V_X}, v{AC}, s[10:11]
    """)
    a.label("L_end")
    a("s_endpgm")
    lds = W * 512 + W * 8 + lds_pad
    nv = (NV + 7) // 8 * 8
    out = HEADER + f"; @launch grid=({NWG},1,1) block=({64*W},1,1) lds={lds}\n"
    out += f""".amdgcn_target "amdgcn-amd-amdhsa--gfx950"
.text
.globl {NAME}_kernel
.p2align 8
.type {NAME}_kernel,@function
{NAME}_kernel:
"""
    out += a.text()
    out += f""".section .rodata,"a"
.p2align 6
.amdhsa_kernel {NAME}_kernel
  .amdhsa_next_free_vgpr {nv}
  .amdhsa_next_free_sgpr 32
  .amdhsa_accum_offset {nv}
  .amdhsa_group_segment_fixed_size 0
  .amdhsa_kernarg_size 48
  .amdhsa_user_sgpr_count 2
  .amdhsa_user_sgpr_kernarg_segment_ptr 1
  .amdhsa_system_sgpr_workgroup_id_x 1
  .amdhsa_float_denorm_mode_32 3
.end_amdhsa_kernel
"""
    return out

if __name__ == "__main__":
    p = argparse.ArgumentParser()
    p.add_argument("-S", type=int, default=4)
    p.add_argument("-W", type=int, default=8)
    p.add_argument("-R", type=int, default=32)
    p.add_argument("--pol", default="")
    p.add_argument("--splitmajor", action="store_true")
    p.add_argument("-o", default="-")
    args = p.parse_args()
    pol = (" " + args.pol) if args.pol else ""
    txt = gen(args.S, args.W, args.R, pol, not args.splitmajor)
    if args.o == "-": sys.stdout.write(txt)
    else: open(args.o, "w").write(txt)
```

```python
import sys, argparse

HEADER = """\
"""
NAME = "standalone__gqa_softmax__decode"

class Asm:
    def __init__(self): self.lines = []
    def __call__(self, s):
        for l in s.strip("\n").split("\n"):
            l = l.strip()
            if l: self.lines.append("    " + l)
    def label(self, s): self.lines.append(s + ":")
    def text(self): return "\n".join(self.lines) + "\n"

def parse_map(spec, names):
    rows = spec.split(",")
    assert len(rows) == 18, rows
    cols = {n: 0 for n in names}
    for i, r in enumerate(rows):
        for t in r.split("^"):
            cols[t] ^= 256 << i
    return cols

def split_funcs(cols, nx, nsplitbits):
    rows = []
    for b in range(20, 26):
        m = 0
        for k in range(nx):
            if cols[f"x{k}"] >> b & 1: m |= 1 << k
        rows.append(m)
    def rank(rs):
        rs = list(rs); rk = 0
        for c in range(nx):
            p = next((i for i in range(rk, len(rs)) if rs[i] >> c & 1), None)
            if p is None: continue
            rs[rk], rs[p] = rs[p], rs[rk]
            for i in range(len(rs)):
                if i != rk and rs[i] >> c & 1: rs[i] ^= rs[rk]
            rk += 1
        return rk
    assert rank(rows) == 6
    extra = []
    for k in range(nx):
        if len(extra) == nsplitbits: break
        if rank(rows + [1 << e for e in extra] + [1 << k]) == 6 + len(extra) + 1: extra.append(k)
    assert len(extra) == nsplitbits
    return extra

def gen(S=4, W=8, R=32, pol=" nt", diag=False, spec=None, param=False, lds_min=0, novalu=False, forcev=0, thr=0, thrmask=0x55, outpol="", dstart=False, warm=""):
    NH, SK = 64, 4096
    KW = SK // (S * W); NL = KW // 4; NG = NL // 16
    assert NL % 16 == 0
    NWG = NH * S
    nj = NL.bit_length() - 1; nw = W.bit_length() - 1; nx = NWG.bit_length() - 1; ns = S.bit_length() - 1
    names = ["r0", "r1"] + [f"j{k}" for k in range(nj)] + [f"w{k}" for k in range(nw)] + [f"x{k}" for k in range(nx)]
    a = Asm()
    NST = 16
    def stamp(i):
        if diag: a(f"s_memrealtime s[{32+2*i}:{33+2*i}]")
    V_OFF, V_Q, V_T = 1, 2, 6
    V_S = V_T + 16
    V_ACC = V_S + 4 * NG
    V_U = (V_ACC + 8 + 1) // 2 * 2
    V_M = V_U + 8; V_L = V_M + 1; V_X = V_L + 1
    V_RING = (V_X + 4 + 3) // 4 * 4
    NV = V_RING + 4 * R
    assert NV <= 256, NV
    def ring(i, e=None):
        b = V_RING + 4 * (i % R)
        return f"v[{b}:{b+3}]" if e is None else f"v{b+e}"
    S_HEAD, S_SPLIT, S_WAVE, S_T0, S_T1, S_C, S_SO, S_B = 16, 17, 18, 19, 20, 21, 22, 23
    S_KB, S_VB = 24, 28
    S_P = 64
    if not param:
        cols = parse_map(spec, names)
        ex = split_funcs(cols, nx, ns)
        for i, k in enumerate(ex): cols[f"x{k}"] ^= 1 << (26 + i)
        P = []; acc = 0
        for k in range(nj):
            acc ^= cols[f"j{k}"]; P.append(acc)
        rsh = [cols["r0"].bit_length() - 1, cols["r1"].bit_length() - 1]
    pr = lambda i: f"s{S_P+i}"
    a(f"""
    s_cmp_ge_u32 s2, {NWG}
    s_cbranch_scc1 L_exit
    """)
    if diag:
        for i in range(1, NST): a(f"s_mov_b32 s{32+2*i}, 0")
    stamp(0)
    a(f"""
    s_load_dwordx4 s[4:7], s[0:1], 0
    s_load_dwordx4 s[8:11], s[0:1], 16
    s_load_dwordx4 s[12:15], s[0:1], 32
    """)
    if param:
        a(f"s_load_dwordx16 s[{S_P}:{S_P+15}], s[0:1], 48")
        a(f"s_load_dwordx8 s[{S_P+16}:{S_P+23}], s[0:1], 112")
    a(f"""
    v_lshrrev_b32 v{V_X}, 6, v0
    v_and_b32 v{V_OFF}, 15, v0
    v_readfirstlane_b32 s{S_WAVE}, v{V_X}
    v_lshlrev_b32 v{V_OFF}, 4, v{V_OFF}
    v_bfe_u32 v{V_X+2}, v0, 4, 1
    v_bfe_u32 v{V_X+3}, v0, 5, 1
    s_mov_b32 s{S_C}, 0x3e0293ee
    s_mov_b32 s{S_KB+2}, 0x4000000
    s_mov_b32 s{S_KB+3}, 0x20000
    s_mov_b32 s{S_VB+2}, 0x4000000
    s_mov_b32 s{S_VB+3}, 0x20000
    """)
    if param:
        a("s_waitcnt lgkmcnt(0)")
        if dstart: stamp(1)
        a(f"s_mov_b32 s{S_B}, 0")
        for k in range(nw):
            a(f"s_bitcmp1_b32 s{S_WAVE}, {k}\ns_cselect_b32 s{S_T0}, {pr(2+nj+k)}, 0\ns_xor_b32 s{S_B}, s{S_B}, s{S_T0}")
        for k in range(nx):
            a(f"s_bitcmp1_b32 s2, {k}\ns_cselect_b32 s{S_T0}, {pr(2+nj+nw+k)}, 0\ns_xor_b32 s{S_B}, s{S_B}, s{S_T0}")
        r0s, r1s = pr(0), pr(1)
    else:
        a(f"s_mov_b32 s{S_B}, 0")
        for k in range(nw):
            a(f"s_bitcmp1_b32 s{S_WAVE}, {k}\ns_cselect_b32 s{S_T0}, {cols[f'w{k}']}, 0\ns_xor_b32 s{S_B}, s{S_B}, s{S_T0}")
        for k in range(nx):
            a(f"s_bitcmp1_b32 s2, {k}\ns_cselect_b32 s{S_T0}, {cols[f'x{k}']}, 0\ns_xor_b32 s{S_B}, s{S_B}, s{S_T0}")
        r0s, r1s = str(rsh[0]), str(rsh[1])
        if dstart: stamp(4)
        a("s_waitcnt lgkmcnt(0)")
        if dstart: stamp(1)
    a(f"""
    s_bfe_u32 s{S_SPLIT}, s{S_B}, {(ns<<16)|26}
    s_and_b32 s{S_B}, s{S_B}, 0x3ffffff
    s_lshr_b32 s{S_HEAD}, s{S_B}, 20
    s_lshl_b32 s{S_T0}, s{S_HEAD}, 8
    v_add_u32 v{V_X+1}, s{S_T0}, v{V_OFF}
    v_lshlrev_b32 v{V_X+2}, {r0s}, v{V_X+2}
    v_lshlrev_b32 v{V_X+3}, {r1s}, v{V_X+3}
    s_mov_b32 s{S_KB}, s6
    s_mov_b32 s{S_KB+1}, s7
    global_load_dwordx4 v[{V_Q}:{V_Q+3}], v{V_X+1}, s[4:5]
    v_or3_b32 v{V_OFF}, v{V_OFF}, v{V_X+2}, v{V_X+3}
    s_mov_b32 s{S_VB}, s8
    s_mov_b32 s{S_VB+1}, s9
    """)
    if thr:
        a(f"""
        s_getreg_b32 s{S_T0}, hwreg(HW_REG_XCC_ID, 0, 3)
        s_lshr_b32 s{S_T0}, {thrmask}, s{S_T0}
        s_and_b32 s{S_T0}, s{S_T0}, 1
        s_cselect_b64 vcc, -1, 0
        """)
    total = 2 * NL
    issued = [0]
    lab = [0]
    seq = [0]; seq_of = {}
    def issue():
        i = issued[0]
        if i >= total: return
        isK = i < NL
        j = i if isK else i - NL
        base = S_KB if isK else S_VB
        if j == 0:
            a(f"s_mov_b32 s{S_SO}, s{S_B}")
        else:
            c = (j & -j).bit_length() - 1
            a(f"s_xor_b32 s{S_SO}, s{S_SO}, {pr(2+c) if param else P[c]}")
        a(f"buffer_load_dwordx4 {ring(i)}, v{V_OFF}, s[{base}:{base+3}], s{S_SO} offen{pol}")
        seq_of[i] = seq[0]; seq[0] += 1
        issued[0] += 1
    for i in range(min(R, total)):
        issue()
        if dstart and i == 0: stamp(2)
        if dstart == 2 and i in (1, 3, 7, 11): stamp({1: 5, 3: 6, 7: 7, 11: 8}[i])
    if dstart: stamp(3)
    if warm:
        a(f"v_mov_b32 v{V_X+2}, 0")
        if "v" in warm:
            a(f"buffer_load_dword v{V_X}, v{V_X+2}, s[{S_VB}:{S_VB+3}], s{S_B} offen{pol}"); seq[0] += 1
        if "w" in warm:
            a(f"s_lshl_b32 s{S_T0}, s{S_HEAD}, {10 + ns}")
            a(f"v_mov_b32 v{V_X+3}, s{S_T0}")
            a(f"global_load_dword v{V_X}, v{V_X+3}, s[14:15] sc1"); seq[0] += 1
        if "d" in warm:
            a(f"global_load_dword v{V_X}, v{V_X+2}, s[12:13] sc1"); seq[0] += 1
        if "o" in warm:
            a(f"global_load_dword v{V_X}, v{V_X+2}, s[10:11] sc1"); seq[0] += 1
    def wait_for(i):
        n = seq[0] - 1 - seq_of[i]
        if thr and n >= R - 1 and R - 1 - thr >= 0:
            lab[0] += 1
            a(f"s_cbranch_vccz L_thr{lab[0]}")
            a(f"s_waitcnt vmcnt({n - thr})")
            a.label(f"L_thr{lab[0]}")
        a(f"s_waitcnt vmcnt({n})")
        if i == 0: stamp(9)
        if (i + 1) % (total // 8) == 0 and not (dstart and (i + 1) // (total // 8) <= (4 if dstart == 1 else 8)): stamp((i + 1) // (total // 8))
    for g in range(NG):
        for jj in range(16):
            i = g * 16 + jj
            wait_for(i)
            t = V_T + jj
            a(f"v_dot2_f32_bf16 v{t}, {ring(i,0)}, v{V_Q}, 0")
            a(f"v_dot2_f32_bf16 v{t}, {ring(i,1)}, v{V_Q+1}, v{t}")
            a(f"v_dot2_f32_bf16 v{t}, {ring(i,2)}, v{V_Q+2}, v{t}")
            a(f"v_dot2_f32_bf16 v{t}, {ring(i,3)}, v{V_Q+3}, v{t}")
            issue()
        a("s_nop 2")
        for i in range(8):
            a(f"v_add_f32_dpp v{V_T+i}, v{V_T+i}, v{V_T+i} row_ror:8 row_mask:0xf bank_mask:0x3")
        for i in range(8):
            a(f"v_add_f32_dpp v{V_T+i}, v{V_T+i+8}, v{V_T+i+8} row_ror:8 row_mask:0xf bank_mask:0xc")
        for i in range(4):
            a(f"v_add_f32_dpp v{V_T+i}, v{V_T+i}, v{V_T+i} row_half_mirror row_mask:0xf bank_mask:0x5")
        for i in range(4):
            a(f"v_add_f32_dpp v{V_T+i}, v{V_T+i+4}, v{V_T+i+4} row_half_mirror row_mask:0xf bank_mask:0xa")
        for i in range(4):
            a(f"v_add_f32_dpp v{V_T+i}, v{V_T+i}, v{V_T+i} quad_perm:[1,0,3,2] row_mask:0xf bank_mask:0xf")
        for i in range(4):
            a(f"v_add_f32_dpp v{V_T+i}, v{V_T+i}, v{V_T+i} quad_perm:[2,3,0,1] row_mask:0xf bank_mask:0xf")
        for i in range(4):
            a(f"v_mul_f32 v{V_S+4*g+i}, s{S_C}, v{V_T+i}")
    n = 4 * NG
    a(f"v_max_f32 v{V_M}, v{V_S}, v{V_S+1}")
    for k in range(2, n, 2):
        a(f"v_max3_f32 v{V_M}, v{V_M}, v{V_S+k}, v{V_S+k+1}")
    def xreduce(op, r):
        a(f"""
        s_nop 1
        {op}_dpp v{r}, v{r}, v{r} row_ror:4 row_mask:0xf bank_mask:0xf
        s_nop 1
        {op}_dpp v{r}, v{r}, v{r} row_ror:8 row_mask:0xf bank_mask:0xf
        s_nop 0
        v_mov_b32 v{V_X}, v{r}
        s_nop 1
        v_permlane16_swap_b32 v{r}, v{V_X}
        s_nop 0
        {op} v{r}, v{r}, v{V_X}
        s_nop 0
        v_mov_b32 v{V_X}, v{r}
        s_nop 1
        v_permlane32_swap_b32 v{r}, v{V_X}
        s_nop 0
        {op} v{r}, v{r}, v{V_X}
        """)
    xreduce("v_max_f32", V_M)
    for i in range(n): a(f"v_sub_f32 v{V_S+i}, v{V_S+i}, v{V_M}")
    for i in range(n): a(f"v_exp_f32 v{V_S+i}, v{V_S+i}")
    a("s_nop 0")
    a(f"v_add_f32 v{V_L}, v{V_S}, v{V_S+1}")
    for i in range(2, n): a(f"v_add_f32 v{V_L}, v{V_L}, v{V_S+i}")
    for e in range(8): a(f"v_mov_b32 v{V_ACC+e}, 0")
    xreduce("v_add_f32", V_L)
    for j in range(NL):
        i = NL + j
        g, jj = divmod(j, 16)
        preg = V_S + 4 * g + (jj & 3); b = jj >> 2
        wait_for(i)
        for e in range(4):
            a(f"v_lshlrev_b32 v{V_U+2*e}, 16, {ring(i,e)}")
            a(f"v_and_b32 v{V_U+2*e+1}, 0xffff0000, {ring(i,e)}")
        issue()
        for e in range(8):
            a(f"v_fmac_f32_dpp v{V_ACC+e}, v{preg}, v{V_U+e} row_newbcast:{4*b} row_mask:0xf bank_mask:0xf")
    a("s_nop 1")
    for e in range(4): a(f"v_permlane32_swap_b32 v{V_ACC+e}, v{V_ACC+e+4}")
    a("s_nop 0")
    for e in range(4): a(f"v_add_f32 v{V_ACC+e}, v{V_ACC+e}, v{V_ACC+e+4}")
    a("s_nop 1")
    for e in range(2): a(f"v_permlane16_swap_b32 v{V_ACC+e}, v{V_ACC+e+2}")
    a("s_nop 0")
    AC = V_U
    a(f"v_add_f32 v{AC}, v{V_ACC}, v{V_ACC+2}")
    a(f"v_add_f32 v{AC+1}, v{V_ACC+1}, v{V_ACC+3}")
    LDS_ML = W * 512
    a(f"""
    v_and_b32 v{V_X}, 15, v0
    v_lshlrev_b32 v{V_X}, 5, v{V_X}
    v_bfe_u32 v{V_X+1}, v0, 4, 2
    v_lshl_add_u32 v{V_X}, v{V_X+1}, 3, v{V_X}
    s_lshl_b32 s{S_T0}, s{S_WAVE}, 9
    v_add_u32 v{V_X}, s{S_T0}, v{V_X}
    ds_write_b64 v{V_X}, v[{AC}:{AC+1}]
    s_lshl_b32 s{S_T0}, s{S_WAVE}, 3
    s_add_u32 s{S_T0}, s{S_T0}, {LDS_ML}
    v_mov_b32 v{V_X+1}, s{S_T0}
    v_mov_b32 v{AC+2}, v{V_M}
    v_mov_b32 v{AC+3}, v{V_L}
    ds_write_b64 v{V_X+1}, v[{AC+2}:{AC+3}]
    s_waitcnt lgkmcnt(0)
    s_barrier
    """)
    stamp(10)
    a(f"""
    s_cmp_lg_u32 s{S_WAVE}, 0
    s_cbranch_scc1 L_end
    """)
    B = V_RING
    a(f"v_lshlrev_b32 v{V_X}, 3, v0")
    a(f"v_mov_b32 v{V_X+1}, {LDS_ML}")
    for w in range(W): a(f"ds_read_b64 v[{B+2*W+2*w}:{B+2*W+2*w+1}], v{V_X+1} offset:{8*w}")
    for w in range(W): a(f"ds_read_b64 v[{B+2*w}:{B+2*w+1}], v{V_X} offset:{512*w}")
    a(f"s_waitcnt lgkmcnt({min(W,15)})")
    ML = B + 2 * W
    def combine(nparts, OB, ML):
        if nparts == 1: a(f"v_mov_b32 v{V_M}, v{ML}")
        else: a(f"v_max_f32 v{V_M}, v{ML}, v{ML+2}")
        for w in range(2, nparts): a(f"v_max_f32 v{V_M}, v{V_M}, v{ML+2*w}")
        for w in range(nparts): a(f"v_sub_f32 v{ML+2*w}, v{ML+2*w}, v{V_M}")
        for w in range(nparts): a(f"v_exp_f32 v{ML+2*w}, v{ML+2*w}")
        a("s_nop 0")
        a(f"v_mul_f32 v{V_L}, v{ML}, v{ML+1}")
        for w in range(1, nparts): a(f"v_fmac_f32 v{V_L}, v{ML+2*w}, v{ML+2*w+1}")
        a("s_waitcnt lgkmcnt(0) vmcnt(0)")
        a(f"v_mul_f32 v{AC}, v{ML}, v{OB}")
        a(f"v_mul_f32 v{AC+1}, v{ML}, v{OB+1}")
        for w in range(1, nparts):
            a(f"v_fmac_f32 v{AC}, v{ML+2*w}, v{OB+2*w}")
            a(f"v_fmac_f32 v{AC+1}, v{ML+2*w}, v{OB+2*w+1}")
    combine(W, B, ML)
    a(f"""
    s_mul_i32 s{S_T0}, s{S_HEAD}, {S}
    s_add_u32 s{S_T1}, s{S_T0}, s{S_SPLIT}
    s_lshl_b32 s{S_T1}, s{S_T1}, 10
    v_add_u32 v{V_X+1}, s{S_T1}, v{V_X}
    global_store_dwordx2 v{V_X+1}, v[{AC}:{AC+1}], s[14:15] sc1
    v_mov_b32 v{AC+2}, v{V_M}
    v_mov_b32 v{AC+3}, v{V_L}
    v_mov_b32 v{V_X+2}, s{S_T1}
    s_mov_b64 exec, 1
    global_store_dwordx2 v{V_X+2}, v[{AC+2}:{AC+3}], s[14:15] offset:512 sc1
    s_lshl_b32 s{S_T1}, s{S_HEAD}, 2
    v_mov_b32 v{V_X+2}, s{S_T1}
    v_mov_b32 v{V_X+3}, 1
    s_waitcnt vmcnt(0)
    """)
    stamp(11)
    a(f"""
    global_atomic_add v{V_X+3}, v{V_X+2}, v{V_X+3}, s[12:13] sc0
    s_waitcnt vmcnt(0)
    """)
    stamp(12)
    a(f"""
    v_readfirstlane_b32 s{S_T1}, v{V_X+3}
    s_mov_b64 exec, -1
    s_cmp_lg_u32 s{S_T1}, {S-1}
    s_cbranch_scc1 L_end
    s_lshl_b32 s{S_T0}, s{S_T0}, 10
    v_add_u32 v{V_X+1}, s{S_T0}, v{V_X}
    v_mov_b32 v{V_X+2}, s{S_T0}
    """)
    ML2 = B + 2 * S
    for s in range(S):
        if s and s % 4 == 0: a(f"v_add_u32 v{V_X+2}, 4096, v{V_X+2}")
        a(f"global_load_dwordx2 v[{ML2+2*s}:{ML2+2*s+1}], v{V_X+2}, s[14:15] offset:{1024*(s%4)+512} sc1")
    for s in range(S):
        if s and s % 4 == 0: a(f"v_add_u32 v{V_X+1}, 4096, v{V_X+1}")
        a(f"global_load_dwordx2 v[{B+2*s}:{B+2*s+1}], v{V_X+1}, s[14:15] offset:{1024*(s%4)} sc1")
    a(f"s_waitcnt vmcnt({S})")
    combine(S, B, ML2)
    a(f"""
    v_rcp_f32 v{V_L}, v{V_L}
    s_nop 0
    v_mul_f32 v{AC}, v{AC}, v{V_L}
    v_mul_f32 v{AC+1}, v{AC+1}, v{V_L}
    v_cvt_pk_bf16_f32 v{AC}, v{AC}, v{AC+1}
    s_lshl_b32 s{S_T0}, s{S_HEAD}, 8
    v_lshlrev_b32 v{V_X}, 2, v0
    v_add_u32 v{V_X}, s{S_T0}, v{V_X}
    global_store_dword v{V_X}, v{AC}, s[10:11]{outpol}
    """)
    stamp(13)
    a.label("L_end")
    if diag:
        a("s_waitcnt vmcnt(0)")
        stamp(15)
        a("s_waitcnt lgkmcnt(0)")
        a("s_mov_b64 exec, -1")
        a("s_getreg_b32 s60, hwreg(HW_REG_XCC_ID)")
        a("s_getreg_b32 s3, hwreg(HW_REG_HW_ID)")
        a("s_lshl_b32 s3, s3, 4")
        a("s_and_b32 s60, s60, 15")
        a("s_or_b32 s60, s60, s3")
        for i in range(NST): a(f"v_writelane_b32 v2, s{32+2*i}, {i}")
        a(f"""
        s_mul_i32 s3, s2, {W}
        s_add_u32 s3, s3, s{S_WAVE}
        s_lshl_b32 s3, s3, 6
        s_add_u32 s3, s3, 0x1000000
        v_and_b32 v3, 63, v0
        v_lshlrev_b32 v3, 2, v3
        v_add_u32 v3, s3, v3
        s_mov_b64 exec, 0xffff
        global_store_dword v3, v2, s[14:15]
        """)
    a.label("L_exit")
    a("s_endpgm")
    lds = max(W * 512 + W * 8, lds_min)
    nv = (NV + 7) // 8 * 8
    acc = nv
    if forcev:
        acc = min(256, max(nv, forcev)); nv = max(nv, forcev)
    out = HEADER + f"; @launch grid=({NWG},1,1) block=({64*W},1,1) lds={lds}\n"
    out += f""".amdgcn_target "amdgcn-amd-amdhsa--gfx950"
.text
.globl {NAME}_kernel
.p2align 8
.type {NAME}_kernel,@function
{NAME}_kernel:
"""
    out += a.text()
    out += f""".section .rodata,"a"
.p2align 6
.amdhsa_kernel {NAME}_kernel
  .amdhsa_next_free_vgpr {nv}
  .amdhsa_next_free_sgpr {100 if (diag or param) else 32}
  .amdhsa_accum_offset {acc}
  .amdhsa_group_segment_fixed_size 0
  .amdhsa_kernarg_size 48
  .amdhsa_user_sgpr_count 2
  .amdhsa_user_sgpr_kernarg_segment_ptr 1
  .amdhsa_system_sgpr_workgroup_id_x 1
  .amdhsa_float_denorm_mode_32 3
.end_amdhsa_kernel
"""
    return out

if __name__ == "__main__":
    p = argparse.ArgumentParser()
    p.add_argument("-S", type=int, default=4)
    p.add_argument("-W", type=int, default=8)
    p.add_argument("-R", type=int, default=32)
    p.add_argument("--pol", default="nt")
    p.add_argument("--diag", action="store_true")
    p.add_argument("--param", action="store_true")
    p.add_argument("--spec", default="r0,r1,j0,j1,w0,j2,w1,j3,w2,j4,x0,x1,x2,x3,x4,x5,x6,x7")
    p.add_argument("--ldsmin", type=int, default=0)
    p.add_argument("--forcev", type=int, default=0)
    p.add_argument("--thr", type=int, default=0)
    p.add_argument("--warm", default="")
    p.add_argument("--dstart", type=int, default=0)
    p.add_argument("--outpol", default="")
    p.add_argument("--thrmask", type=lambda x: int(x, 0), default=0x55)
    p.add_argument("-o", default="-")
    args = p.parse_args()
    pol = (" " + args.pol.replace("+", " ")) if args.pol else ""
    txt = gen(args.S, args.W, args.R, pol, args.diag, args.spec, args.param, args.ldsmin, forcev=args.forcev, thr=args.thr, thrmask=args.thrmask, outpol=(" " + args.outpol.replace("+", " ")) if args.outpol else "", dstart=args.dstart, warm=args.warm)
    if args.o == "-": sys.stdout.write(txt)
    else: open(args.o, "w").write(txt)
```

```python
import sys, argparse
from gen4 import HEADER, NAME, Asm, parse_map, split_funcs

def gen(R=16, pol=" nt", diag=False, spec=None, param=False, xoff=4, spinmax=1 << 20, midbar=4, skew=0, skewbit=0, hspec="", skewaddr=-1):
    S, W, NH, SK = 4, 4, 64, 4096
    KW = SK // (S * W); NL = KW // 4; NG = NL // 16
    NWG = NH * S
    nj, nw, nx, ns = 6, 2, 8, 2
    names = ["r0", "r1"] + [f"j{k}" for k in range(nj)] + [f"w{k}" for k in range(nw)] + [f"x{k}" for k in range(nx)]
    a = Asm()
    NST = 16
    def stamp(i):
        if diag: a(f"s_memrealtime s[{32+2*i}:{33+2*i}]")
    V_OFF, V_Q, V_T = 1, 2, 6
    V_S = V_T + 16
    V_ACC = V_S + 4 * NG + 4
    V_U = V_ACC + 8
    V_M, V_L, V_F, V_X = V_U + 8, V_U + 9, V_U + 10, V_U + 11
    V_Y, V_Z = V_X + 1, V_X + 2
    V_LA = V_X + 3
    V_SA = V_X + 4
    V_TK = V_X + 5
    V_MW, V_LW = V_X + 6, V_X + 7
    V_P = (V_X + 8 + 3) // 4 * 4
    V_P2 = V_P + 12
    V_RING = V_P2 + 12
    NV = V_RING + 4 * R
    assert NV <= 256, NV
    def ring(i, e=None):
        b = V_RING + 4 * (i % R)
        return f"v[{b}:{b+3}]" if e is None else f"v{b+e}"
    S_HEAD, S_SPLIT, S_WAVE, S_T0, S_T1, S_C, S_SO, S_B = 16, 17, 18, 19, 20, 21, 22, 23
    S_KB, S_VB = 24, 28
    S_TK, S_CNT = 3, 96
    S_P = 64
    if not param:
        cols = parse_map(spec, names)
        ex = split_funcs(cols, nx, ns)
        for i, k in enumerate(ex): cols[f"x{k}"] ^= 1 << (26 + i)
        P = []; acc = 0
        for k in range(nj):
            acc ^= cols[f"j{k}"]; P.append(acc)
        rsh = [cols["r0"].bit_length() - 1, cols["r1"].bit_length() - 1]
    pr = lambda i: f"s{S_P+i}"
    HN = ["c0", "c1", "c2", "c3", "e0", "e1", "k0", "k1", "k2"]
    hcols = {}
    if hspec and not param:
        for item in hspec.split(","):
            h, srcs = item.split("=")
            c = 0
            for t in srcs.split("^"):
                assert t[0] in "jw"
                c ^= cols[t]
            hcols[h] = c
    a(f"""
    s_cmp_ge_u32 s2, {NWG}
    s_cbranch_scc1 L_exit
    """)
    if diag:
        for i in range(1, NST): a(f"s_mov_b32 s{32+2*i}, 0")
    stamp(0)
    a(f"""
    s_load_dwordx2 s[{S_KB}:{S_KB+1}], s[0:1], 8
    s_load_dwordx2 s[4:5], s[0:1], 0
    s_load_dwordx2 s[{S_VB}:{S_VB+1}], s[0:1], 16
    s_load_dwordx2 s[10:11], s[0:1], 24
    s_load_dwordx4 s[12:15], s[0:1], 32
    """)
    if param:
        a(f"s_load_dwordx16 s[{S_P}:{S_P+15}], s[0:1], 48")
        a(f"s_load_dwordx16 s[{S_P+16}:{S_P+31}], s[0:1], 112")
    a(f"""
    v_lshrrev_b32 v{V_X}, 6, v0
    v_and_b32 v{V_OFF}, 15, v0
    v_readfirstlane_b32 s{S_WAVE}, v{V_X}
    v_lshlrev_b32 v{V_OFF}, 4, v{V_OFF}
    v_bfe_u32 v{V_Y}, v0, 4, 1
    v_bfe_u32 v{V_Z}, v0, 5, 1
    s_mov_b32 s{S_C}, 0x3e0293ee
    s_mov_b32 s{S_KB+2}, 0x4000000
    s_mov_b32 s{S_KB+3}, 0x20000
    s_mov_b32 s{S_VB+2}, 0x4000000
    s_mov_b32 s{S_VB+3}, 0x20000
    """)
    def addr_calc(wc, xc, r0s, r1s):
        a(f"s_mov_b32 s{S_B}, 0")
        for k in range(nw):
            a(f"s_bitcmp1_b32 s{S_WAVE}, {k}\ns_cselect_b32 s{S_T0}, {wc(k)}, 0\ns_xor_b32 s{S_B}, s{S_B}, s{S_T0}")
        for k in range(nx):
            a(f"s_bitcmp1_b32 s2, {k}\ns_cselect_b32 s{S_T0}, {xc(k)}, 0\ns_xor_b32 s{S_B}, s{S_B}, s{S_T0}")
        used = HN if param else [h for h in HN if h in hcols]
        if used:
            if any(h[0] in "ce" for h in used): a(f"s_getreg_b32 s{S_T1}, hwreg(HW_REG_HW_ID)")
            if any(h[0] == "k" for h in used): a(f"s_getreg_b32 s{S_SO}, hwreg(HW_REG_XCC_ID)")
            for h in used:
                reg = S_SO if h[0] == "k" else S_T1
                bit = {"c": 8, "e": 13, "k": 0}[h[0]] + int(h[1])
                col = pr(18 + HN.index(h)) if param else hcols[h]
                a(f"s_bitcmp1_b32 s{reg}, {bit}\ns_cselect_b32 s{S_T0}, {col}, 0\ns_xor_b32 s{S_B}, s{S_B}, s{S_T0}")
        a(f"""
        s_bfe_u32 s{S_SPLIT}, s{S_B}, {(ns<<16)|26}
        s_and_b32 s{S_B}, s{S_B}, 0x3ffffff
        s_lshr_b32 s{S_HEAD}, s{S_B}, 20
        s_lshl_b32 s{S_T0}, s{S_HEAD}, 8
        v_add_u32 v{V_X}, s{S_T0}, v{V_OFF}
        v_lshlrev_b32 v{V_Y}, {r0s}, v{V_Y}
        v_lshlrev_b32 v{V_Z}, {r1s}, v{V_Z}
        s_lshl_b32 s{S_T0}, s{S_HEAD}, 2
        s_add_u32 s{S_T0}, s{S_T0}, s{S_SPLIT}
        s_lshl_b32 s{S_T0}, s{S_T0}, 10
        v_and_b32 v{V_SA}, 63, v0
        v_or3_b32 v{V_OFF}, v{V_OFF}, v{V_Y}, v{V_Z}
        v_lshl_add_u32 v{V_SA}, v{V_SA}, 4, s{S_T0}
        """)
    if param:
        a("s_waitcnt lgkmcnt(0)")
        addr_calc(lambda k: pr(2+nj+k), lambda k: pr(2+nj+nw+k), pr(0), pr(1))
    else:
        addr_calc(lambda k: cols[f"w{k}"], lambda k: cols[f"x{k}"], str(rsh[0]), str(rsh[1]))
        a("s_waitcnt lgkmcnt(0)")
    a(f"global_load_dwordx4 v[{V_Q}:{V_Q+3}], v{V_X}, s[4:5]")
    import copy
    S_BP = 97
    LDS_ML = W * 512
    MLR = V_T
    def xreduce(op, r):
        a(f"""
        s_nop 1
        {op}_dpp v{r}, v{r}, v{r} row_ror:4 row_mask:0xf bank_mask:0xf
        s_nop 1
        {op}_dpp v{r}, v{r}, v{r} row_ror:8 row_mask:0xf bank_mask:0xf
        s_nop 0
        v_mov_b32 v{V_X}, v{r}
        s_nop 1
        v_permlane16_swap_b32 v{r}, v{V_X}
        s_nop 0
        {op} v{r}, v{r}, v{V_X}
        s_nop 0
        v_mov_b32 v{V_X}, v{r}
        s_nop 1
        v_permlane32_swap_b32 v{r}, v{V_X}
        s_nop 0
        {op} v{r}, v{r}, v{V_X}
        """)
    def poll_issue(base=None):
        base = V_P if base is None else base
        for k in range(1, 4):
            a(f"v_xor_b32 v{V_Y}, {k << 10}, v{V_SA}")
            a(f"global_load_dwordx4 v[{base+4*(k-1)}:{base+4*(k-1)+3}], v{V_Y}, s[14:15] sc1")
    def xor_cols(dst, basereg, j):
        if not param:
            J = 0
            for k in range(nj):
                if j >> k & 1: J ^= cols[f"j{k}"]
            if J: a(f"s_xor_b32 s{dst}, s{basereg}, {J}")
            else: a(f"s_mov_b32 s{dst}, s{basereg}")
        else:
            a(f"s_mov_b32 s{dst}, s{basereg}")
            cnt = [0] * nj
            for k in range(nj):
                if j >> k & 1:
                    cnt[k] ^= 1
                    if k: cnt[k-1] ^= 1
            for k in range(nj):
                if cnt[k]: a(f"s_xor_b32 s{dst}, s{dst}, {pr(2+k)}")
    def body(slots, tag):
        ns_ = len(slots)
        total = 2 * ns_
        XIDX = total - xoff
        st = dict(issued=0, seq=0, seq_of={})
        def issue(st):
            i = st["issued"]
            if i >= total: return
            isK = i < ns_
            sidx = i if isK else i - ns_
            own, j = slots[sidx]
            base = S_KB if isK else S_VB
            if own and sidx > 0 and slots[sidx-1] == (True, j-1):
                c = (j & -j).bit_length() - 1
                a(f"s_xor_b32 s{S_SO}, s{S_SO}, {pr(2+c) if param else P[c]}")
            else:
                xor_cols(S_SO, S_B if own else S_BP, j)
            a(f"buffer_load_dwordx4 {ring(i)}, v{V_OFF}, s[{base}:{base+3}], s{S_SO} offen{pol}")
            st["seq_of"][i] = st["seq"]; st["seq"] += 1
            st["issued"] += 1
            if i == XIDX:
                a(f"""
                s_cmp_lg_u32 s{S_WAVE}, 0
                s_cbranch_scc1 L_notk{tag}
                s_lshl_b32 s{S_T0}, s{S_HEAD}, 2
                v_mov_b32 v{V_Y}, s{S_T0}
                v_mov_b32 v{V_TK}, 1
                s_mov_b64 exec, 1
                global_atomic_add v{V_TK}, v{V_Y}, v{V_TK}, s[12:13] sc0
                s_mov_b64 exec, -1
                """)
                a.label(f"L_notk{tag}")
        for i in range(R): issue(st)
        a(f"""
        s_cmp_lg_u32 s{S_WAVE}, 0
        s_cbranch_scc1 L_noclr{tag}
        v_mov_b32 v{V_P}, 0
        v_mov_b32 v{V_P+1}, 0
        v_mov_b32 v{V_P+2}, 0
        v_mov_b32 v{V_P+3}, 0
        global_store_dwordx4 v{V_SA}, v[{V_P}:{V_P+3}], s[14:15] sc1
        """)
        a.label(f"L_noclr{tag}")
        marks = {max(0, (k * total) // 8 - 1): k for k in range(1, 9)}
        def wait_for(st, i):
            n = st["seq"] - 1 - st["seq_of"][i]
            a(f"s_waitcnt vmcnt({n})")
            if i == 0: stamp(9)
            if i in marks: stamp(marks[i])
        groups = []; p = 0
        while ns_ - p >= 16: groups.append((p, 16)); p += 16
        while p < ns_: groups.append((p, min(4, ns_ - p))); p += min(4, ns_ - p)
        sreg = V_S; where = {}
        for (p0, n) in groups:
            for jj in range(n):
                i = p0 + jj
                wait_for(st, i)
                t = V_T + jj
                a(f"v_dot2_f32_bf16 v{t}, {ring(i,0)}, v{V_Q}, 0")
                a(f"v_dot2_f32_bf16 v{t}, {ring(i,1)}, v{V_Q+1}, v{t}")
                a(f"v_dot2_f32_bf16 v{t}, {ring(i,2)}, v{V_Q+2}, v{t}")
                a(f"v_dot2_f32_bf16 v{t}, {ring(i,3)}, v{V_Q+3}, v{t}")
                issue(st)
            a("s_nop 2")
            if n == 16:
                for i in range(8):
                    a(f"v_add_f32_dpp v{V_T+i}, v{V_T+i}, v{V_T+i} row_ror:8 row_mask:0xf bank_mask:0x3")
                for i in range(8):
                    a(f"v_add_f32_dpp v{V_T+i}, v{V_T+i+8}, v{V_T+i+8} row_ror:8 row_mask:0xf bank_mask:0xc")
                for i in range(4):
                    a(f"v_add_f32_dpp v{V_T+i}, v{V_T+i}, v{V_T+i} row_half_mirror row_mask:0xf bank_mask:0x5")
                for i in range(4):
                    a(f"v_add_f32_dpp v{V_T+i}, v{V_T+i+4}, v{V_T+i+4} row_half_mirror row_mask:0xf bank_mask:0xa")
                for i in range(4):
                    a(f"v_add_f32_dpp v{V_T+i}, v{V_T+i}, v{V_T+i} quad_perm:[1,0,3,2] row_mask:0xf bank_mask:0xf")
                for i in range(4):
                    a(f"v_add_f32_dpp v{V_T+i}, v{V_T+i}, v{V_T+i} quad_perm:[2,3,0,1] row_mask:0xf bank_mask:0xf")
                for i in range(4):
                    a(f"v_mul_f32 v{sreg+i}, s{S_C}, v{V_T+i}")
                for jj in range(16): where[p0 + jj] = (sreg + (jj & 3), jj >> 2)
                sreg += 4
            else:
                T0, T1, T2, T3 = V_T, V_T+1, V_T+2, V_T+3
                a(f"""
                v_add_f32_dpp v{T0}, v{T0}, v{T0} row_ror:8 row_mask:0xf bank_mask:0x3
                v_add_f32_dpp v{T1}, v{T1}, v{T1} row_ror:8 row_mask:0xf bank_mask:0x3
                v_add_f32_dpp v{T0}, v{T2}, v{T2} row_ror:8 row_mask:0xf bank_mask:0xc
                v_add_f32_dpp v{T1}, v{T3}, v{T3} row_ror:8 row_mask:0xf bank_mask:0xc
                s_nop 0
                v_add_f32_dpp v{T0}, v{T0}, v{T0} row_half_mirror row_mask:0xf bank_mask:0x5
                v_add_f32_dpp v{T0}, v{T1}, v{T1} row_half_mirror row_mask:0xf bank_mask:0xa
                s_nop 1
                v_add_f32_dpp v{T0}, v{T0}, v{T0} quad_perm:[1,0,3,2] row_mask:0xf bank_mask:0xf
                s_nop 1
                v_add_f32_dpp v{T0}, v{T0}, v{T0} quad_perm:[2,3,0,1] row_mask:0xf bank_mask:0xf
                v_mul_f32 v{sreg}, s{S_C}, v{T0}
                """)
                if n < 4:
                    m = (0xf << n) & 0xf
                    a(f"v_mov_b32 v{T1}, 0xff800000")
                    a("s_nop 1")
                    a(f"v_mov_b32_dpp v{sreg}, v{T1} quad_perm:[0,1,2,3] row_mask:0xf bank_mask:{hex(m)}")
                for jj in range(n): where[p0 + jj] = (sreg, jj)
                sreg += 1
        n = sreg - V_S
        assert sreg <= V_ACC
        a(f"v_max_f32 v{V_M}, v{V_S}, v{V_S+1}")
        k = 2
        while k + 1 < n:
            a(f"v_max3_f32 v{V_M}, v{V_M}, v{V_S+k}, v{V_S+k+1}"); k += 2
        if k < n: a(f"v_max_f32 v{V_M}, v{V_M}, v{V_S+k}")
        xreduce("v_max_f32", V_M)
        for i in range(n): a(f"v_sub_f32 v{V_S+i}, v{V_S+i}, v{V_M}")
        for i in range(n): a(f"v_exp_f32 v{V_S+i}, v{V_S+i}")
        a("s_nop 0")
        a(f"v_add_f32 v{V_L}, v{V_S}, v{V_S+1}")
        for i in range(2, n): a(f"v_add_f32 v{V_L}, v{V_L}, v{V_S+i}")
        for e in range(8): a(f"v_mov_b32 v{V_ACC+e}, 0")
        xreduce("v_add_f32", V_L)
        assert V_M % 2 == 0 and V_L == V_M + 1
        a(f"""
        s_lshl_b32 s{S_T0}, s{S_WAVE}, 3
        s_add_u32 s{S_T0}, s{S_T0}, {LDS_ML}
        v_mov_b32 v{V_Y}, s{S_T0}
        v_and_b32 v{V_LA}, 15, v0
        v_lshlrev_b32 v{V_LA}, 5, v{V_LA}
        ds_write_b64 v{V_Y}, v[{V_M}:{V_M+1}]
        v_bfe_u32 v{V_Z}, v0, 4, 2
        v_lshl_add_u32 v{V_LA}, v{V_Z}, 3, v{V_LA}
        s_lshl_b32 s{S_T0}, s{S_WAVE}, 9
        v_add_u32 v{V_LA}, s{S_T0}, v{V_LA}
        """)
        def vload(st, j, second=False):
            i = ns_ + j
            preg, b = where[j]
            wait_for(st, i)
            if second:
                poll_issue(V_P2); st["seq"] += 3
            for e in range(4):
                a(f"v_lshlrev_b32 v{V_U+2*e}, 16, {ring(i,e)}")
                a(f"v_and_b32 v{V_U+2*e+1}, 0xffff0000, {ring(i,e)}")
            issue(st)
            for e in range(8):
                a(f"v_fmac_f32_dpp v{V_ACC+e}, v{preg}, v{V_U+e} row_newbcast:{4*b} row_mask:0xf bank_mask:0xf")
        jx = XIDX - ns_
        for j in range(jx + 1):
            if j == midbar:
                a(f"""
                s_waitcnt lgkmcnt(0)
                s_barrier
                v_mov_b32 v{V_Y}, {LDS_ML}
                ds_read_b128 v[{MLR}:{MLR+3}], v{V_Y}
                ds_read_b128 v[{MLR+4}:{MLR+7}], v{V_Y} offset:16
                """)
            if j == midbar + 2:
                a(f"""
                s_waitcnt lgkmcnt(0)
                v_max_f32 v{V_MW}, v{MLR}, v{MLR+2}
                v_max3_f32 v{V_MW}, v{V_MW}, v{MLR+4}, v{MLR+6}
                v_sub_f32 v{MLR}, v{MLR}, v{V_MW}
                v_sub_f32 v{MLR+2}, v{MLR+2}, v{V_MW}
                v_sub_f32 v{MLR+4}, v{MLR+4}, v{V_MW}
                v_sub_f32 v{MLR+6}, v{MLR+6}, v{V_MW}
                v_sub_f32 v{V_F}, v{V_M}, v{V_MW}
                v_exp_f32 v{MLR}, v{MLR}
                v_exp_f32 v{MLR+2}, v{MLR+2}
                v_exp_f32 v{MLR+4}, v{MLR+4}
                v_exp_f32 v{MLR+6}, v{MLR+6}
                v_exp_f32 v{V_F}, v{V_F}
                v_mul_f32 v{V_LW}, v{MLR}, v{MLR+1}
                v_fmac_f32 v{V_LW}, v{MLR+2}, v{MLR+3}
                v_fmac_f32 v{V_LW}, v{MLR+4}, v{MLR+5}
                v_fmac_f32 v{V_LW}, v{MLR+6}, v{MLR+7}
                """)
            vload(st, j)
        a(f"""
        s_mov_b32 s{S_TK}, 0
        s_cmp_lg_u32 s{S_WAVE}, 0
        s_cbranch_scc1 L_rest{tag}
        v_readfirstlane_b32 s{S_TK}, v{V_TK}
        s_nop 0
        s_cmp_lg_u32 s{S_TK}, {S-1}
        s_cbranch_scc1 L_rest{tag}
        """)
        stc = copy.deepcopy(st)
        poll_issue()
        stc["seq"] += 3
        for j in range(jx + 1, ns_): vload(stc, j, second=(j == ns_ - 1))
        a("s_branch L_vdone")
        a.label(f"L_rest{tag}")
        for j in range(jx + 1, ns_): vload(st, j)
    if skew == 0:
        body([(True, j) for j in range(NL)], "a")
    else:
        if skewaddr >= 0:
            assert not param
            assert all(not (cols[n] >> skewaddr & 1) for n in names if n[0] in "rjw"), "skew address bit must be constant per workgroup"
            cand = []
            for delta in range(1, 1 << nx):
                D = 0
                for k in range(nx):
                    if delta >> k & 1: D ^= cols[f"x{k}"]
                if (D >> 20) & 63 == 0 and D >> skewaddr & 1: cand.append(D & 0x3ffffff)
            assert cand
            a(f"s_xor_b32 s{S_BP}, s{S_B}, {cand[0]}")
            a(f"s_bitcmp1_b32 s{S_B}, {skewaddr}")
        elif param:
            a(f"s_xor_b32 s{S_BP}, s{S_B}, {pr(2+nj+nw+skewbit)}")
            a(f"s_and_b32 s{S_BP}, s{S_BP}, 0x3ffffff")
            a(f"s_bitcmp1_b32 s2, {skewbit}")
        else:
            assert (cols[f'x{skewbit}'] >> 20) & 63 == 0, "skew bit must be a split bit"
            a(f"s_xor_b32 s{S_BP}, s{S_B}, {cols[f'x{skewbit}'] & 0x3ffffff}")
            a(f"s_bitcmp1_b32 s2, {skewbit}")
        a("s_cbranch_scc1 L_odd")
        body([(True, j) for j in range(NL)] + [(False, j) for j in range(NL - skew, NL)], "e")
        a("s_branch L_vdone")
        a.label("L_odd")
        body([(True, j) for j in range(NL - skew)], "o")
    a.label("L_vdone")
    a("s_nop 1")
    for e in range(4): a(f"v_permlane32_swap_b32 v{V_ACC+e}, v{V_ACC+e+4}")
    a("s_nop 0")
    for e in range(4): a(f"v_add_f32 v{V_ACC+e}, v{V_ACC+e}, v{V_ACC+e+4}")
    a("s_nop 1")
    for e in range(2): a(f"v_permlane16_swap_b32 v{V_ACC+e}, v{V_ACC+e+2}")
    a("s_nop 0")
    AC = V_U
    a(f"""
    v_add_f32 v{AC}, v{V_ACC}, v{V_ACC+2}
    v_add_f32 v{AC+1}, v{V_ACC+1}, v{V_ACC+3}
    v_mul_f32 v{AC}, v{AC}, v{V_F}
    v_mul_f32 v{AC+1}, v{AC+1}, v{V_F}
    ds_write_b64 v{V_LA}, v[{AC}:{AC+1}]
    s_cmp_lg_u32 s{S_WAVE}, 0
    s_cbranch_scc1 L_bar_exit
    v_lshlrev_b32 v{V_X}, 3, v0
    s_cmp_lg_u32 s{S_TK}, {S-1}
    s_cbranch_scc1 L_producer
    """)
    T = V_T
    B = V_RING
    def check(base, target):
        a(f"""
        v_cmp_ne_u32 vcc, 0, v{base+3}
        v_cmp_ne_u32 s[4:5], 0, v{base+7}
        v_cmp_ne_u32 s[6:7], 0, v{base+11}
        s_nop 1
        s_and_b64 vcc, vcc, s[4:5]
        s_and_b64 vcc, vcc, s[6:7]
        s_cmp_eq_u64 vcc, -1
        s_cbranch_scc1 {target}
        """)
    def factors(P):
        a(f"""
        v_max_f32 v{T}, v{V_MW}, v{P+2}
        v_max3_f32 v{T}, v{T}, v{P+6}, v{P+10}
        v_sub_f32 v{T+1}, v{V_MW}, v{T}
        v_sub_f32 v{T+2}, v{P+2}, v{T}
        v_sub_f32 v{T+3}, v{P+6}, v{T}
        v_sub_f32 v{T+4}, v{P+10}, v{T}
        v_exp_f32 v{T+1}, v{T+1}
        v_exp_f32 v{T+2}, v{T+2}
        v_exp_f32 v{T+3}, v{T+3}
        v_exp_f32 v{T+4}, v{T+4}
        s_lshl_b32 s{S_T0}, s{S_HEAD}, 8
        v_lshlrev_b32 v{V_Z}, 2, v0
        v_mul_f32 v{T+5}, v{T+1}, v{V_LW}
        v_mul_f32 v{T+6}, v{T+2}, v{P+3}
        v_mul_f32 v{T+7}, v{T+3}, v{P+7}
        v_mul_f32 v{T+8}, v{T+4}, v{P+11}
        v_add_f32 v{T+5}, v{T+5}, v{T+6}
        v_add_f32 v{T+7}, v{T+7}, v{T+8}
        v_mul_f32 v{T+9}, v{T+2}, v{P}
        v_add_f32 v{T+5}, v{T+5}, v{T+7}
        v_mul_f32 v{T+10}, v{T+2}, v{P+1}
        v_rcp_f32 v{T+5}, v{T+5}
        v_mul_f32 v{T+11}, v{T+3}, v{P+4}
        v_mul_f32 v{T+12}, v{T+3}, v{P+5}
        v_mul_f32 v{T+13}, v{T+4}, v{P+8}
        v_mul_f32 v{T+14}, v{T+4}, v{P+9}
        v_add_u32 v{V_Z}, s{S_T0}, v{V_Z}
        v_add_f32 v{T+11}, v{T+11}, v{T+13}
        v_add_f32 v{T+12}, v{T+12}, v{T+14}
        """)
    def own_sum():
        for w in range(W): a(f"ds_read_b64 v[{B+2*w}:{B+2*w+1}], v{V_X} offset:{512*w}")
    def own_sum2():
        a(f"""
        s_waitcnt lgkmcnt(2)
        v_add_f32 v{B}, v{B}, v{B+2}
        v_add_f32 v{B+1}, v{B+1}, v{B+3}
        s_waitcnt lgkmcnt(0)
        v_add_f32 v{B+4}, v{B+4}, v{B+6}
        v_add_f32 v{B+5}, v{B+5}, v{B+7}
        v_add_f32 v{B}, v{B}, v{B+4}
        v_add_f32 v{B+1}, v{B+1}, v{B+5}
        """)
    def final():
        a(f"""
        v_mul_f32 v{B}, v{T+1}, v{B}
        v_mul_f32 v{B+1}, v{T+1}, v{B+1}
        v_add_f32 v{B}, v{B}, v{T+9}
        v_add_f32 v{B+1}, v{B+1}, v{T+10}
        v_add_f32 v{B}, v{B}, v{T+11}
        v_add_f32 v{B+1}, v{B+1}, v{T+12}
        v_mul_f32 v{B}, v{B}, v{T+5}
        v_mul_f32 v{B+1}, v{B+1}, v{T+5}
        v_cvt_pk_bf16_f32 v{T+6}, v{B}, v{B+1}
        global_store_dword v{V_Z}, v{T+6}, s[10:11]
        """)
        stamp(13)
        if diag: a(f"s_add_u32 s{32+2*12}, s{S_CNT}, 1")
        a("s_branch L_end")
    a(f"s_mov_b32 s{S_CNT}, 0")
    a("s_waitcnt vmcnt(3)")
    check(V_P, "L_fast")
    a(f"""
    s_waitcnt lgkmcnt(0)
    s_barrier
    """)
    stamp(10)
    own_sum()
    poll_issue(V_P)
    own_sum2()
    a.label("L_poll")
    a("s_waitcnt vmcnt(3)")
    check(V_P2, "L_finB")
    a(f"""
    s_add_u32 s{S_CNT}, s{S_CNT}, 1
    s_cmp_ge_u32 s{S_CNT}, {spinmax}
    s_cbranch_scc1 L_finB
    """)
    poll_issue(V_P2)
    a("s_waitcnt vmcnt(3)")
    check(V_P, "L_finA")
    poll_issue(V_P)
    a("s_branch L_poll")
    a.label("L_finB")
    stamp(11)
    factors(V_P2)
    final()
    a.label("L_finA")
    stamp(11)
    factors(V_P)
    final()
    a.label("L_fast")
    stamp(11)
    factors(V_P)
    a(f"""
    s_waitcnt lgkmcnt(0)
    s_barrier
    """)
    stamp(10)
    own_sum()
    own_sum2()
    final()
    a.label("L_producer")
    a(f"""
    s_waitcnt lgkmcnt(0)
    s_barrier
    """)
    stamp(10)
    B4 = (B + 3) // 4 * 4
    for w in range(W): a(f"ds_read_b64 v[{B+2*w}:{B+2*w+1}], v{V_X} offset:{512*w}")
    G = V_P
    a(f"""
    v_mov_b32 v{G+2}, v{V_MW}
    v_mov_b32 v{G+3}, v{V_LW}
    s_waitcnt lgkmcnt(2)
    v_add_f32 v{B}, v{B}, v{B+2}
    v_add_f32 v{B+1}, v{B+1}, v{B+3}
    s_waitcnt lgkmcnt(0)
    v_add_f32 v{B+4}, v{B+4}, v{B+6}
    v_add_f32 v{B+5}, v{B+5}, v{B+7}
    v_add_f32 v{G}, v{B}, v{B+4}
    v_add_f32 v{G+1}, v{B+1}, v{B+5}
    global_store_dwordx4 v{V_SA}, v[{G}:{G+3}], s[14:15] sc1
    """)
    stamp(13)
    a("s_branch L_end")
    a.label("L_bar_exit")
    a(f"""
    s_waitcnt lgkmcnt(0)
    s_barrier
    """)
    stamp(10)
    a.label("L_end")
    if diag:
        a("s_waitcnt vmcnt(0)")
        stamp(15)
        a("s_waitcnt lgkmcnt(0)")
        a("s_mov_b64 exec, -1")
        a(f"s_add_u32 s44, s{S_HEAD}, 1")
        a(f"s_add_u32 s46, s{S_TK}, 1")
        a("s_getreg_b32 s60, hwreg(HW_REG_XCC_ID)")
        a("s_getreg_b32 s3, hwreg(HW_REG_HW_ID)")
        a("s_lshl_b32 s3, s3, 4")
        a("s_and_b32 s60, s60, 15")
        a("s_or_b32 s60, s60, s3")
        for i in range(NST): a(f"v_writelane_b32 v2, s{32+2*i}, {i}")
        a(f"""
        s_mul_i32 s3, s2, {W}
        s_add_u32 s3, s3, s{S_WAVE}
        s_lshl_b32 s3, s3, 6
        s_add_u32 s3, s3, 0x1000000
        v_and_b32 v3, 63, v0
        v_lshlrev_b32 v3, 2, v3
        v_add_u32 v3, s3, v3
        s_mov_b64 exec, 0xffff
        global_store_dword v3, v2, s[14:15]
        """)
    a.label("L_exit")
    a("s_endpgm")
    lds = W * 512 + W * 8
    nv = (NV + 7) // 8 * 8
    out = HEADER + f"; @launch grid=({NWG},1,1) block=({64*W},1,1) lds={lds}\n"
    out += f""".amdgcn_target "amdgcn-amd-amdhsa--gfx950"
.text
.globl {NAME}_kernel
.p2align 8
.type {NAME}_kernel,@function
{NAME}_kernel:
"""
    out += a.text()
    out += f""".section .rodata,"a"
.p2align 6
.amdhsa_kernel {NAME}_kernel
  .amdhsa_next_free_vgpr {nv}
  .amdhsa_next_free_sgpr 100
  .amdhsa_accum_offset {nv}
  .amdhsa_group_segment_fixed_size 0
  .amdhsa_kernarg_size 48
  .amdhsa_user_sgpr_count 2
  .amdhsa_user_sgpr_kernarg_segment_ptr 1
  .amdhsa_system_sgpr_workgroup_id_x 1
  .amdhsa_float_denorm_mode_32 3
.end_amdhsa_kernel
"""
    return out

if __name__ == "__main__":
    p = argparse.ArgumentParser()
    p.add_argument("-R", type=int, default=16)
    p.add_argument("--pol", default="nt")
    p.add_argument("--diag", action="store_true")
    p.add_argument("--param", action="store_true")
    p.add_argument("--spec", default="r0,r1,j0,j1,w0,j2,w1,j3,j4,j5,x0,x1,x2,x3,x4,x5,x6,x7")
    p.add_argument("--xoff", type=int, default=4)
    p.add_argument("--midbar", type=int, default=4)
    p.add_argument("--skew", type=int, default=0)
    p.add_argument("--hspec", default="")
    p.add_argument("--skewaddr", type=int, default=-1)
    p.add_argument("-o", default="-")
    args = p.parse_args()
    pol = (" " + args.pol.replace("+", " ")) if args.pol else ""
    txt = gen(args.R, pol, args.diag, args.spec, args.param, args.xoff, midbar=args.midbar, skew=args.skew, hspec=args.hspec, skewaddr=args.skewaddr)
    if args.o == "-": sys.stdout.write(txt)
    else: open(args.o, "w").write(txt)
```

```python
import sys, argparse
from gen4 import HEADER, NAME, Asm, parse_map, split_funcs

def gen(R=16, pol=" nt", diag=False, spec=None, param=False, xoff=4, spinmax=1 << 20, midbar=4, skew=0, skewbit=0, hspec="", skewaddr=-1, dup=False, cpf=0, pk=True):
    S, W, NH, SK = 4, 4, 64, 4096
    KW = SK // (S * W); NL = KW // 4; NG = NL // 16
    NWG = NH * S
    nj, nw, nx, ns = 6, 2, 8, 2
    names = ["r0", "r1"] + [f"j{k}" for k in range(nj)] + [f"w{k}" for k in range(nw)] + [f"x{k}" for k in range(nx)]
    a = Asm()
    NST = 16
    def stamp(i):
        if diag: a(f"s_memrealtime s[{32+2*i}:{33+2*i}]")
    V_OFF, V_Q, V_T = 1, 2, 6
    V_S = V_T + 16
    V_ACC = V_S + 4 * NG + 4
    V_U = V_ACC + 8
    V_M, V_L, V_F, V_X = V_U + 8, V_U + 9, V_U + 10, V_U + 11
    V_Y, V_Z = V_X + 1, V_X + 2
    V_LA = V_X + 3
    V_SA = V_X + 4
    V_TK = V_X + 5
    V_MW, V_LW = V_X + 6, V_X + 7
    V_P = (V_X + 8 + 3) // 4 * 4
    V_P2 = V_P + 12
    V_PB = V_P2 + 12
    V_RING = V_PB + 4
    NV = V_RING + 4 * R
    assert NV <= 256, NV
    def ring(i, e=None):
        b = V_RING + 4 * (i % R)
        return f"v[{b}:{b+3}]" if e is None else f"v{b+e}"
    S_HEAD, S_SPLIT, S_WAVE, S_T0, S_T1, S_C, S_SO, S_B = 16, 17, 18, 19, 20, 21, 22, 23
    S_KB, S_VB = 24, 28
    S_TK, S_CNT = 3, 96
    S_MSK = 98
    S_PJ = 56
    S_P = 64
    if not param:
        cols = parse_map(spec, names)
        ex = split_funcs(cols, nx, ns)
        for i, k in enumerate(ex): cols[f"x{k}"] ^= 1 << (26 + i)
        P = []; acc = 0
        for k in range(nj):
            acc ^= cols[f"j{k}"]; P.append(acc)
        rsh = [cols["r0"].bit_length() - 1, cols["r1"].bit_length() - 1]
    pr = lambda i: f"s{S_P+i}"
    HN = ["c0", "c1", "c2", "c3", "e0", "e1", "k0", "k1", "k2"]
    hcols = {}
    if hspec and not param:
        for item in hspec.split(","):
            h, srcs = item.split("=")
            c = 0
            for t in srcs.split("^"):
                assert t[0] in "jw"
                c ^= cols[t]
            hcols[h] = c
    a(f"""
    s_cmp_ge_u32 s2, {NWG}
    s_cbranch_scc1 L_exit
    """)
    if diag:
        for i in range(1, NST): a(f"s_mov_b32 s{32+2*i}, 0")
    stamp(0)
    a(f"""
    s_load_dwordx2 s[{S_KB}:{S_KB+1}], s[0:1], 8
    s_load_dwordx2 s[4:5], s[0:1], 0
    s_load_dwordx2 s[{S_VB}:{S_VB+1}], s[0:1], 16
    s_load_dwordx2 s[10:11], s[0:1], 24
    s_load_dwordx4 s[12:15], s[0:1], 32
    """)
    if param:
        a(f"s_load_dwordx16 s[{S_P}:{S_P+15}], s[0:1], 48")
        a(f"s_load_dwordx16 s[{S_P+16}:{S_P+31}], s[0:1], 112")
    a(f"""
    v_lshrrev_b32 v{V_X}, 6, v0
    v_and_b32 v{V_OFF}, 15, v0
    v_readfirstlane_b32 s{S_WAVE}, v{V_X}
    v_lshlrev_b32 v{V_OFF}, 4, v{V_OFF}
    v_bfe_u32 v{V_Y}, v0, 4, 1
    v_bfe_u32 v{V_Z}, v0, 5, 1
    s_mov_b32 s{S_C}, 0x3e0293ee
    s_mov_b32 s{S_MSK}, 0xffff0000
    s_mov_b32 s{S_KB+2}, 0x4000000
    s_mov_b32 s{S_KB+3}, 0x20000
    s_mov_b32 s{S_VB+2}, 0x4000000
    s_mov_b32 s{S_VB+3}, 0x20000
    """)
    if not param:
        if diag: S_PJ = 88
        for k in range(nj): a(f"s_mov_b32 s{S_PJ+k}, {P[k]}")
    def addr_calc(wc, xc, r0s, r1s):
        a(f"s_mov_b32 s{S_B}, 0")
        for k in range(nw):
            a(f"s_bitcmp1_b32 s{S_WAVE}, {k}\ns_cselect_b32 s{S_T0}, {wc(k)}, 0\ns_xor_b32 s{S_B}, s{S_B}, s{S_T0}")
        for k in range(nx):
            a(f"s_bitcmp1_b32 s2, {k}\ns_cselect_b32 s{S_T0}, {xc(k)}, 0\ns_xor_b32 s{S_B}, s{S_B}, s{S_T0}")
        used = HN if param else [h for h in HN if h in hcols]
        if used:
            if any(h[0] in "ce" for h in used): a(f"s_getreg_b32 s{S_T1}, hwreg(HW_REG_HW_ID)")
            if any(h[0] == "k" for h in used): a(f"s_getreg_b32 s{S_SO}, hwreg(HW_REG_XCC_ID)")
            for h in used:
                reg = S_SO if h[0] == "k" else S_T1
                bit = {"c": 8, "e": 13, "k": 0}[h[0]] + int(h[1])
                col = pr(18 + HN.index(h)) if param else hcols[h]
                a(f"s_bitcmp1_b32 s{reg}, {bit}\ns_cselect_b32 s{S_T0}, {col}, 0\ns_xor_b32 s{S_B}, s{S_B}, s{S_T0}")
        a(f"""
        s_bfe_u32 s{S_SPLIT}, s{S_B}, {(ns<<16)|26}
        s_and_b32 s{S_B}, s{S_B}, 0x3ffffff
        s_lshr_b32 s{S_HEAD}, s{S_B}, 20
        s_lshl_b32 s{S_T0}, s{S_HEAD}, 8
        v_add_u32 v{V_X}, s{S_T0}, v{V_OFF}
        v_lshlrev_b32 v{V_Y}, {r0s}, v{V_Y}
        v_lshlrev_b32 v{V_Z}, {r1s}, v{V_Z}
        s_lshl_b32 s{S_T0}, s{S_HEAD}, 2
        s_add_u32 s{S_T0}, s{S_T0}, s{S_SPLIT}
        s_lshl_b32 s{S_T0}, s{S_T0}, 10
        v_and_b32 v{V_SA}, 63, v0
        v_or3_b32 v{V_OFF}, v{V_OFF}, v{V_Y}, v{V_Z}
        v_lshl_add_u32 v{V_SA}, v{V_SA}, 4, s{S_T0}
        """)
    if param:
        a("s_waitcnt lgkmcnt(0)")
        addr_calc(lambda k: pr(2+nj+k), lambda k: pr(2+nj+nw+k), pr(0), pr(1))
    else:
        addr_calc(lambda k: cols[f"w{k}"], lambda k: cols[f"x{k}"], str(rsh[0]), str(rsh[1]))
        a("s_waitcnt lgkmcnt(0)")
    a(f"global_load_dwordx4 v[{V_Q}:{V_Q+3}], v{V_X}, s[4:5]")
    import copy
    S_BP = 97
    LDS_ML = W * 512
    MLR = V_T
    def xreduce(op, r):
        a(f"""
        s_nop 1
        {op}_dpp v{r}, v{r}, v{r} row_ror:4 row_mask:0xf bank_mask:0xf
        s_nop 1
        {op}_dpp v{r}, v{r}, v{r} row_ror:8 row_mask:0xf bank_mask:0xf
        s_nop 0
        v_mov_b32 v{V_X}, v{r}
        s_nop 1
        v_permlane16_swap_b32 v{r}, v{V_X}
        s_nop 0
        {op} v{r}, v{r}, v{V_X}
        s_nop 0
        v_mov_b32 v{V_X}, v{r}
        s_nop 1
        v_permlane32_swap_b32 v{r}, v{V_X}
        s_nop 0
        {op} v{r}, v{r}, v{V_X}
        """)
    def poll_issue(base=None):
        base = V_P if base is None else base
        for k in range(1, 4):
            a(f"v_xor_b32 v{V_Y}, {k << 10}, v{V_SA}")
            a(f"global_load_dwordx4 v[{base+4*(k-1)}:{base+4*(k-1)+3}], v{V_Y}, s[14:15] sc1")
    def xor_cols(dst, basereg, j):
        if not param:
            J = 0
            for k in range(nj):
                if j >> k & 1: J ^= cols[f"j{k}"]
            if J: a(f"s_xor_b32 s{dst}, s{basereg}, {J}")
            else: a(f"s_mov_b32 s{dst}, s{basereg}")
        else:
            a(f"s_mov_b32 s{dst}, s{basereg}")
            cnt = [0] * nj
            for k in range(nj):
                if j >> k & 1:
                    cnt[k] ^= 1
                    if k: cnt[k-1] ^= 1
            for k in range(nj):
                if cnt[k]: a(f"s_xor_b32 s{dst}, s{dst}, {pr(2+k)}")
    def body(slots, tag):
        ns_ = len(slots)
        total = 2 * ns_
        XIDX = total - xoff
        st = dict(issued=0, seq=0, seq_of={})
        def issue(st):
            i = st["issued"]
            if i >= total: return
            isK = i < ns_
            sidx = i if isK else i - ns_
            own, j = slots[sidx]
            base = S_KB if isK else S_VB
            if own and sidx > 0 and slots[sidx-1] == (True, j-1):
                c = (j & -j).bit_length() - 1
                a(f"s_xor_b32 s{S_SO}, s{S_SO}, {pr(2+c) if param else 's%d' % (S_PJ+c)}")
            else:
                xor_cols(S_SO, S_B if own else S_BP, j)
            a(f"buffer_load_dwordx4 {ring(i)}, v{V_OFF}, s[{base}:{base+3}], s{S_SO} offen{pol}")
            st["seq_of"][i] = st["seq"]; st["seq"] += 1
            st["issued"] += 1
            if i == XIDX:
                a(f"""
                s_cmp_lg_u32 s{S_WAVE}, 0
                s_cbranch_scc1 L_notk{tag}
                s_lshl_b32 s{S_T0}, s{S_HEAD}, 2
                v_mov_b32 v{V_Y}, s{S_T0}
                v_mov_b32 v{V_Z}, 1
                v_mov_b32 v{V_TK}, -1
                s_mov_b64 exec, 1
                global_atomic_add v{V_TK}, v{V_Y}, v{V_Z}, s[12:13] sc0
                s_mov_b64 exec, -1
                """)
                a.label(f"L_notk{tag}")
        for i in range(R): issue(st)
        if cpf:
            if cpf == 2:
                a(f"""
                s_getreg_b32 s{S_T0}, hwreg(HW_REG_HW_ID, 8, 8)
                s_and_b32 s{S_T0}, s{S_T0}, 0xef
                s_cmp_lg_u32 s{S_T0}, 1
                s_cbranch_scc1 L_nopf{tag}
                """)
            a(f"""
            s_cmp_ge_u32 s{S_WAVE}, 2
            s_cbranch_scc1 L_nopf{tag}
            s_getpc_b64 s[4:5]
            """)
            a.label(f"L_pc{tag}")
            a(f"""
            s_lshl_b32 s{S_T0}, s{S_WAVE}, 13
            v_and_b32 v{V_X}, 63, v0
            v_lshl_add_u32 v{V_X}, v{V_X}, 7, s{S_T0}
            v_min_u32 v{V_X}, L_exit-L_pc{tag}, v{V_X}
            v_mov_b32 v{V_Z}, s5
            v_add_co_u32 v{V_Y}, vcc, s4, v{V_X}
            s_nop 1
            v_addc_co_u32 v{V_Z}, vcc, 0, v{V_Z}, vcc
            global_load_dword v{V_X}, v[{V_Y}:{V_Z}], off
            """)
            a.label(f"L_nopf{tag}")
        a(f"""
        s_cmp_lg_u32 s{S_WAVE}, 0
        s_cbranch_scc1 L_noclr{tag}
        v_mov_b32 v{V_P}, 0
        v_mov_b32 v{V_P+1}, 0
        v_mov_b32 v{V_P+2}, 0
        v_mov_b32 v{V_P+3}, 0
        global_store_dwordx4 v{V_SA}, v[{V_P}:{V_P+3}], s[14:15] sc1
        """)
        a.label(f"L_noclr{tag}")
        marks = {max(0, (k * total) // 8 - 1): k for k in range(1, 9)}
        def wait_for(st, i):
            n = st["seq"] - 1 - st["seq_of"][i]
            a(f"s_waitcnt vmcnt({n})")
            if i == 0: stamp(9)
            if i in marks: stamp(marks[i])
        groups = []; p = 0
        while ns_ - p >= 16: groups.append((p, 16)); p += 16
        while p < ns_: groups.append((p, min(4, ns_ - p))); p += min(4, ns_ - p)
        sreg = V_S; where = {}
        for (p0, n) in groups:
            for jj in range(n):
                i = p0 + jj
                wait_for(st, i)
                t = V_T + jj
                a(f"v_dot2_f32_bf16 v{t}, {ring(i,0)}, v{V_Q}, 0")
                a(f"v_dot2_f32_bf16 v{t}, {ring(i,1)}, v{V_Q+1}, v{t}")
                a(f"v_dot2_f32_bf16 v{t}, {ring(i,2)}, v{V_Q+2}, v{t}")
                a(f"v_dot2_f32_bf16 v{t}, {ring(i,3)}, v{V_Q+3}, v{t}")
                issue(st)
            a("s_nop 2")
            if n == 16:
                for i in range(8):
                    a(f"v_add_f32_dpp v{V_T+i}, v{V_T+i}, v{V_T+i} row_ror:8 row_mask:0xf bank_mask:0x3")
                for i in range(8):
                    a(f"v_add_f32_dpp v{V_T+i}, v{V_T+i+8}, v{V_T+i+8} row_ror:8 row_mask:0xf bank_mask:0xc")
                for i in range(4):
                    a(f"v_add_f32_dpp v{V_T+i}, v{V_T+i}, v{V_T+i} row_half_mirror row_mask:0xf bank_mask:0x5")
                for i in range(4):
                    a(f"v_add_f32_dpp v{V_T+i}, v{V_T+i+4}, v{V_T+i+4} row_half_mirror row_mask:0xf bank_mask:0xa")
                for i in range(4):
                    a(f"v_add_f32_dpp v{V_T+i}, v{V_T+i}, v{V_T+i} quad_perm:[1,0,3,2] row_mask:0xf bank_mask:0xf")
                for i in range(4):
                    a(f"v_add_f32_dpp v{V_T+i}, v{V_T+i}, v{V_T+i} quad_perm:[2,3,0,1] row_mask:0xf bank_mask:0xf")
                for i in range(4):
                    a(f"v_mul_f32 v{sreg+i}, s{S_C}, v{V_T+i}")
                for jj in range(16): where[p0 + jj] = (sreg + (jj & 3), jj >> 2)
                sreg += 4
            else:
                T0, T1, T2, T3 = V_T, V_T+1, V_T+2, V_T+3
                a(f"""
                v_add_f32_dpp v{T0}, v{T0}, v{T0} row_ror:8 row_mask:0xf bank_mask:0x3
                v_add_f32_dpp v{T1}, v{T1}, v{T1} row_ror:8 row_mask:0xf bank_mask:0x3
                v_add_f32_dpp v{T0}, v{T2}, v{T2} row_ror:8 row_mask:0xf bank_mask:0xc
                v_add_f32_dpp v{T1}, v{T3}, v{T3} row_ror:8 row_mask:0xf bank_mask:0xc
                s_nop 0
                v_add_f32_dpp v{T0}, v{T0}, v{T0} row_half_mirror row_mask:0xf bank_mask:0x5
                v_add_f32_dpp v{T0}, v{T1}, v{T1} row_half_mirror row_mask:0xf bank_mask:0xa
                s_nop 1
                v_add_f32_dpp v{T0}, v{T0}, v{T0} quad_perm:[1,0,3,2] row_mask:0xf bank_mask:0xf
                s_nop 1
                v_add_f32_dpp v{T0}, v{T0}, v{T0} quad_perm:[2,3,0,1] row_mask:0xf bank_mask:0xf
                v_mul_f32 v{sreg}, s{S_C}, v{T0}
                """)
                if n < 4:
                    m = (0xf << n) & 0xf
                    a(f"v_mov_b32 v{T1}, 0xff800000")
                    a("s_nop 1")
                    a(f"v_mov_b32_dpp v{sreg}, v{T1} quad_perm:[0,1,2,3] row_mask:0xf bank_mask:{hex(m)}")
                for jj in range(n): where[p0 + jj] = (sreg, jj)
                sreg += 1
        n = sreg - V_S
        assert sreg <= V_ACC
        a(f"v_max_f32 v{V_M}, v{V_S}, v{V_S+1}")
        k = 2
        while k + 1 < n:
            a(f"v_max3_f32 v{V_M}, v{V_M}, v{V_S+k}, v{V_S+k+1}"); k += 2
        if k < n: a(f"v_max_f32 v{V_M}, v{V_M}, v{V_S+k}")
        xreduce("v_max_f32", V_M)
        for i in range(n): a(f"v_sub_f32 v{V_S+i}, v{V_S+i}, v{V_M}")
        for i in range(n): a(f"v_exp_f32 v{V_S+i}, v{V_S+i}")
        a("s_nop 0")
        a(f"v_add_f32 v{V_L}, v{V_S}, v{V_S+1}")
        for i in range(2, n): a(f"v_add_f32 v{V_L}, v{V_L}, v{V_S+i}")
        for e in range(8): a(f"v_mov_b32 v{V_ACC+e}, 0")
        xreduce("v_add_f32", V_L)
        assert V_M % 2 == 0 and V_L == V_M + 1
        a(f"""
        s_lshl_b32 s{S_T0}, s{S_WAVE}, 3
        s_add_u32 s{S_T0}, s{S_T0}, {LDS_ML}
        v_mov_b32 v{V_Y}, s{S_T0}
        v_and_b32 v{V_LA}, 15, v0
        v_lshlrev_b32 v{V_LA}, 5, v{V_LA}
        ds_write_b64 v{V_Y}, v[{V_M}:{V_M+1}]
        v_bfe_u32 v{V_Z}, v0, 4, 2
        v_lshl_add_u32 v{V_LA}, v{V_Z}, 3, v{V_LA}
        s_lshl_b32 s{S_T0}, s{S_WAVE}, 9
        v_add_u32 v{V_LA}, s{S_T0}, v{V_LA}
        """)
        def vload(st, j, second=False):
            i = ns_ + j
            preg, b = where[j]
            wait_for(st, i)
            if second:
                poll_issue(V_P2); st["seq"] += 3
            if pk:
                a(f"v_mov_b32_dpp v{V_PB}, v{preg} row_newbcast:{4*b} row_mask:0xf bank_mask:0xf")
            for e in range(4):
                a(f"v_lshlrev_b32 v{V_U+2*e}, 16, {ring(i,e)}")
                a(f"v_and_b32 v{V_U+2*e+1}, s{S_MSK}, {ring(i,e)}")
            issue(st)
            if pk:
                for e in range(0, 8, 2):
                    a(f"v_pk_fma_f32 v[{V_ACC+e}:{V_ACC+e+1}], v[{V_U+e}:{V_U+e+1}], v[{V_PB}:{V_PB+1}], v[{V_ACC+e}:{V_ACC+e+1}] op_sel_hi:[1,0,1]")
            else:
                for e in range(8):
                    a(f"v_fmac_f32_dpp v{V_ACC+e}, v{preg}, v{V_U+e} row_newbcast:{4*b} row_mask:0xf bank_mask:0xf")
        jx = XIDX - ns_
        for j in range(jx + 1):
            if j == midbar:
                a(f"""
                s_waitcnt lgkmcnt(0)
                s_barrier
                v_mov_b32 v{V_Y}, {LDS_ML}
                ds_read_b128 v[{MLR}:{MLR+3}], v{V_Y}
                ds_read_b128 v[{MLR+4}:{MLR+7}], v{V_Y} offset:16
                """)
            if j == midbar + 2:
                a(f"""
                s_waitcnt lgkmcnt(0)
                v_max_f32 v{V_MW}, v{MLR}, v{MLR+2}
                v_max3_f32 v{V_MW}, v{V_MW}, v{MLR+4}, v{MLR+6}
                v_sub_f32 v{MLR}, v{MLR}, v{V_MW}
                v_sub_f32 v{MLR+2}, v{MLR+2}, v{V_MW}
                v_sub_f32 v{MLR+4}, v{MLR+4}, v{V_MW}
                v_sub_f32 v{MLR+6}, v{MLR+6}, v{V_MW}
                v_sub_f32 v{V_F}, v{V_M}, v{V_MW}
                v_exp_f32 v{MLR}, v{MLR}
                v_exp_f32 v{MLR+2}, v{MLR+2}
                v_exp_f32 v{MLR+4}, v{MLR+4}
                v_exp_f32 v{MLR+6}, v{MLR+6}
                v_exp_f32 v{V_F}, v{V_F}
                v_mul_f32 v{V_LW}, v{MLR}, v{MLR+1}
                v_fmac_f32 v{V_LW}, v{MLR+2}, v{MLR+3}
                v_fmac_f32 v{V_LW}, v{MLR+4}, v{MLR+5}
                v_fmac_f32 v{V_LW}, v{MLR+6}, v{MLR+7}
                """)
            vload(st, j)
        a(f"""
        s_mov_b32 s{S_TK}, 0
        s_cmp_lg_u32 s{S_WAVE}, 0
        s_cbranch_scc1 L_rest{tag}
        v_readfirstlane_b32 s{S_TK}, v{V_TK}
        s_nop 0
        s_cmp_lg_u32 s{S_TK}, -1
        s_cbranch_scc1 L_tkok{tag}
        s_waitcnt vmcnt(0)
        v_readfirstlane_b32 s{S_TK}, v{V_TK}
        s_nop 0
L_tkok{tag}:
        s_cmp_lg_u32 s{S_TK}, {S-1}
        s_cbranch_scc1 L_rest{tag}
        """)
        stc = copy.deepcopy(st)
        poll_issue()
        stc["seq"] += 3
        for j in range(jx + 1, ns_): vload(stc, j, second=(j == ns_ - 1))
        a("s_branch L_vdone")
        a.label(f"L_rest{tag}")
        for j in range(jx + 1, ns_): vload(st, j)
    if skew == 0 and dup:
        a(f"s_bitcmp1_b32 s{S_B}, 11")
        a("s_cbranch_scc1 L_odd")
        body([(True, j) for j in range(NL)], "e")
        a("s_branch L_vdone")
        a.label("L_odd")
        body([(True, j) for j in range(NL)], "o")
    elif skew == 0:
        body([(True, j) for j in range(NL)], "a")
    else:
        if skewaddr >= 0:
            assert not param
            assert all(not (cols[n] >> skewaddr & 1) for n in names if n[0] in "rjw"), "skew address bit must be constant per workgroup"
            cand = []
            for delta in range(1, 1 << nx):
                D = 0
                for k in range(nx):
                    if delta >> k & 1: D ^= cols[f"x{k}"]
                if (D >> 20) & 63 == 0 and D >> skewaddr & 1: cand.append(D & 0x3ffffff)
            assert cand
            a(f"s_xor_b32 s{S_BP}, s{S_B}, {cand[0]}")
            a(f"s_bitcmp1_b32 s{S_B}, {skewaddr}")
        elif param:
            a(f"s_xor_b32 s{S_BP}, s{S_B}, {pr(2+nj+nw+skewbit)}")
            a(f"s_and_b32 s{S_BP}, s{S_BP}, 0x3ffffff")
            a(f"s_bitcmp1_b32 s2, {skewbit}")
        else:
            assert (cols[f'x{skewbit}'] >> 20) & 63 == 0, "skew bit must be a split bit"
            a(f"s_xor_b32 s{S_BP}, s{S_B}, {cols[f'x{skewbit}'] & 0x3ffffff}")
            a(f"s_bitcmp1_b32 s2, {skewbit}")
        a("s_cbranch_scc1 L_odd")
        body([(True, j) for j in range(NL)] + [(False, j) for j in range(NL - skew, NL)], "e")
        a("s_branch L_vdone")
        a.label("L_odd")
        body([(True, j) for j in range(NL - skew)], "o")
    a.label("L_vdone")
    a("s_nop 1")
    for e in range(4): a(f"v_permlane32_swap_b32 v{V_ACC+e}, v{V_ACC+e+4}")
    a("s_nop 0")
    for e in range(4): a(f"v_add_f32 v{V_ACC+e}, v{V_ACC+e}, v{V_ACC+e+4}")
    a("s_nop 1")
    for e in range(2): a(f"v_permlane16_swap_b32 v{V_ACC+e}, v{V_ACC+e+2}")
    a("s_nop 0")
    AC = V_U
    a(f"""
    v_add_f32 v{AC}, v{V_ACC}, v{V_ACC+2}
    v_add_f32 v{AC+1}, v{V_ACC+1}, v{V_ACC+3}
    v_mul_f32 v{AC}, v{AC}, v{V_F}
    v_mul_f32 v{AC+1}, v{AC+1}, v{V_F}
    ds_write_b64 v{V_LA}, v[{AC}:{AC+1}]
    s_cmp_lg_u32 s{S_WAVE}, 0
    s_cbranch_scc1 L_bar_exit
    v_lshlrev_b32 v{V_X}, 3, v0
    s_cmp_lg_u32 s{S_TK}, {S-1}
    s_cbranch_scc1 L_producer
    """)
    T = V_T
    B = V_RING
    def check(base, target):
        a(f"""
        v_cmp_ne_u32 vcc, 0, v{base+3}
        v_cmp_ne_u32 s[4:5], 0, v{base+7}
        v_cmp_ne_u32 s[6:7], 0, v{base+11}
        s_nop 1
        s_and_b64 vcc, vcc, s[4:5]
        s_and_b64 vcc, vcc, s[6:7]
        s_cmp_eq_u64 vcc, -1
        s_cbranch_scc1 {target}
        """)
    def factors(P):
        a(f"""
        v_max_f32 v{T}, v{V_MW}, v{P+2}
        v_max3_f32 v{T}, v{T}, v{P+6}, v{P+10}
        v_sub_f32 v{T+1}, v{V_MW}, v{T}
        v_sub_f32 v{T+2}, v{P+2}, v{T}
        v_sub_f32 v{T+3}, v{P+6}, v{T}
        v_sub_f32 v{T+4}, v{P+10}, v{T}
        v_exp_f32 v{T+1}, v{T+1}
        v_exp_f32 v{T+2}, v{T+2}
        v_exp_f32 v{T+3}, v{T+3}
        v_exp_f32 v{T+4}, v{T+4}
        s_lshl_b32 s{S_T0}, s{S_HEAD}, 8
        v_lshlrev_b32 v{V_Z}, 2, v0
        v_mul_f32 v{T+5}, v{T+1}, v{V_LW}
        v_mul_f32 v{T+6}, v{T+2}, v{P+3}
        v_mul_f32 v{T+7}, v{T+3}, v{P+7}
        v_mul_f32 v{T+8}, v{T+4}, v{P+11}
        v_add_f32 v{T+5}, v{T+5}, v{T+6}
        v_add_f32 v{T+7}, v{T+7}, v{T+8}
        v_mul_f32 v{T+9}, v{T+2}, v{P}
        v_add_f32 v{T+5}, v{T+5}, v{T+7}
        v_mul_f32 v{T+10}, v{T+2}, v{P+1}
        v_rcp_f32 v{T+5}, v{T+5}
        v_mul_f32 v{T+11}, v{T+3}, v{P+4}
        v_mul_f32 v{T+12}, v{T+3}, v{P+5}
        v_mul_f32 v{T+13}, v{T+4}, v{P+8}
        v_mul_f32 v{T+14}, v{T+4}, v{P+9}
        v_add_u32 v{V_Z}, s{S_T0}, v{V_Z}
        v_add_f32 v{T+11}, v{T+11}, v{T+13}
        v_add_f32 v{T+12}, v{T+12}, v{T+14}
        """)
    def own_sum():
        for w in range(W): a(f"ds_read_b64 v[{B+2*w}:{B+2*w+1}], v{V_X} offset:{512*w}")
    def own_sum2():
        a(f"""
        s_waitcnt lgkmcnt(2)
        v_add_f32 v{B}, v{B}, v{B+2}
        v_add_f32 v{B+1}, v{B+1}, v{B+3}
        s_waitcnt lgkmcnt(0)
        v_add_f32 v{B+4}, v{B+4}, v{B+6}
        v_add_f32 v{B+5}, v{B+5}, v{B+7}
        v_add_f32 v{B}, v{B}, v{B+4}
        v_add_f32 v{B+1}, v{B+1}, v{B+5}
        """)
    def final():
        a(f"""
        v_mul_f32 v{B}, v{T+1}, v{B}
        v_mul_f32 v{B+1}, v{T+1}, v{B+1}
        v_add_f32 v{B}, v{B}, v{T+9}
        v_add_f32 v{B+1}, v{B+1}, v{T+10}
        v_add_f32 v{B}, v{B}, v{T+11}
        v_add_f32 v{B+1}, v{B+1}, v{T+12}
        v_mul_f32 v{B}, v{B}, v{T+5}
        v_mul_f32 v{B+1}, v{B+1}, v{T+5}
        v_cvt_pk_bf16_f32 v{T+6}, v{B}, v{B+1}
        global_store_dword v{V_Z}, v{T+6}, s[10:11]
        """)
        stamp(13)
        if diag: a(f"s_add_u32 s{32+2*12}, s{S_CNT}, 1")
        a("s_branch L_end")
    a(f"s_mov_b32 s{S_CNT}, 0")
    a("s_waitcnt vmcnt(3)")
    check(V_P, "L_fast")
    a(f"""
    s_waitcnt lgkmcnt(0)
    s_barrier
    """)
    stamp(10)
    own_sum()
    poll_issue(V_P)
    own_sum2()
    a.label("L_poll")
    a("s_waitcnt vmcnt(3)")
    check(V_P2, "L_finB")
    a(f"""
    s_add_u32 s{S_CNT}, s{S_CNT}, 1
    s_cmp_ge_u32 s{S_CNT}, {spinmax}
    s_cbranch_scc1 L_finB
    """)
    poll_issue(V_P2)
    a("s_waitcnt vmcnt(3)")
    check(V_P, "L_finA")
    poll_issue(V_P)
    a("s_branch L_poll")
    a.label("L_finB")
    stamp(11)
    factors(V_P2)
    final()
    a.label("L_finA")
    stamp(11)
    factors(V_P)
    final()
    a.label("L_fast")
    stamp(11)
    factors(V_P)
    a(f"""
    s_waitcnt lgkmcnt(0)
    s_barrier
    """)
    stamp(10)
    own_sum()
    own_sum2()
    final()
    a.label("L_producer")
    a(f"""
    s_waitcnt lgkmcnt(0)
    s_barrier
    """)
    stamp(10)
    B4 = (B + 3) // 4 * 4
    for w in range(W): a(f"ds_read_b64 v[{B+2*w}:{B+2*w+1}], v{V_X} offset:{512*w}")
    G = V_P
    a(f"""
    v_mov_b32 v{G+2}, v{V_MW}
    v_mov_b32 v{G+3}, v{V_LW}
    s_waitcnt lgkmcnt(2)
    v_add_f32 v{B}, v{B}, v{B+2}
    v_add_f32 v{B+1}, v{B+1}, v{B+3}
    s_waitcnt lgkmcnt(0)
    v_add_f32 v{B+4}, v{B+4}, v{B+6}
    v_add_f32 v{B+5}, v{B+5}, v{B+7}
    v_add_f32 v{G}, v{B}, v{B+4}
    v_add_f32 v{G+1}, v{B+1}, v{B+5}
    global_store_dwordx4 v{V_SA}, v[{G}:{G+3}], s[14:15] sc1
    """)
    stamp(13)
    a("s_branch L_end")
    a.label("L_bar_exit")
    a(f"""
    s_waitcnt lgkmcnt(0)
    s_barrier
    """)
    stamp(10)
    a.label("L_end")
    if diag:
        a("s_waitcnt vmcnt(0)")
        stamp(15)
        a("s_waitcnt lgkmcnt(0)")
        a("s_mov_b64 exec, -1")
        a(f"s_add_u32 s44, s{S_HEAD}, 1")
        a(f"s_add_u32 s46, s{S_TK}, 1")
        a("s_getreg_b32 s60, hwreg(HW_REG_XCC_ID)")
        a("s_getreg_b32 s3, hwreg(HW_REG_HW_ID)")
        a("s_lshl_b32 s3, s3, 4")
        a("s_and_b32 s60, s60, 15")
        a("s_or_b32 s60, s60, s3")
        for i in range(NST): a(f"v_writelane_b32 v2, s{32+2*i}, {i}")
        a(f"""
        s_mul_i32 s3, s2, {W}
        s_add_u32 s3, s3, s{S_WAVE}
        s_lshl_b32 s3, s3, 6
        s_add_u32 s3, s3, 0x1000000
        v_and_b32 v3, 63, v0
        v_lshlrev_b32 v3, 2, v3
        v_add_u32 v3, s3, v3
        s_mov_b64 exec, 0xffff
        global_store_dword v3, v2, s[14:15]
        """)
    a.label("L_exit")
    a("s_endpgm")
    lds = W * 512 + W * 8
    nv = (NV + 7) // 8 * 8
    out = HEADER + f"; @launch grid=({NWG},1,1) block=({64*W},1,1) lds={lds}\n"
    out += f""".amdgcn_target "amdgcn-amd-amdhsa--gfx950"
.text
.globl {NAME}_kernel
.p2align 8
.type {NAME}_kernel,@function
{NAME}_kernel:
"""
    out += a.text()
    out += f""".section .rodata,"a"
.p2align 6
.amdhsa_kernel {NAME}_kernel
  .amdhsa_next_free_vgpr {nv}
  .amdhsa_next_free_sgpr 100
  .amdhsa_accum_offset {nv}
  .amdhsa_group_segment_fixed_size 0
  .amdhsa_kernarg_size 48
  .amdhsa_user_sgpr_count 2
  .amdhsa_user_sgpr_kernarg_segment_ptr 1
  .amdhsa_system_sgpr_workgroup_id_x 1
  .amdhsa_float_denorm_mode_32 3
.end_amdhsa_kernel
"""
    return out

if __name__ == "__main__":
    p = argparse.ArgumentParser()
    p.add_argument("-R", type=int, default=16)
    p.add_argument("--pol", default="nt")
    p.add_argument("--diag", action="store_true")
    p.add_argument("--param", action="store_true")
    p.add_argument("--spec", default="r0,r1,j0,j1,w0,j2,w1,j3,j4,j5,x0,x1,x2,x3,x4,x5,x6,x7")
    p.add_argument("--xoff", type=int, default=4)
    p.add_argument("--midbar", type=int, default=4)
    p.add_argument("--skew", type=int, default=0)
    p.add_argument("--hspec", default="")
    p.add_argument("--skewaddr", type=int, default=-1)
    p.add_argument("--dup", action="store_true")
    p.add_argument("--cpf", type=int, default=0)
    p.add_argument("--nopk", action="store_true")
    p.add_argument("-o", default="-")
    args = p.parse_args()
    pol = (" " + args.pol.replace("+", " ")) if args.pol else ""
    txt = gen(args.R, pol, args.diag, args.spec, args.param, args.xoff, midbar=args.midbar, skew=args.skew, hspec=args.hspec, skewaddr=args.skewaddr, dup=args.dup, cpf=args.cpf, pk=not args.nopk)
    if args.o == "-": sys.stdout.write(txt)
    else: open(args.o, "w").write(txt)
```

```python
import sys, argparse
from gen4 import HEADER, NAME, Asm, parse_map, split_funcs

NOTES = """\
;
;    workgroup id only, so the result does not depend on placement.
;    cleared their slots, and polls them (bounded) until every 16-byte granule {o0, o1, max, sum} has a non-zero sum.
"""

def gen(R=16, pol=" nt", diag=False, spec=None, param=False, xoff=4, spinmax=1 << 20, midbar=4, skew=0, skewbit=0, hspec="", skewaddr=-1, dup=False, cpf=0, pk=True, qpos=0):
    S, W, NH, SK = 4, 4, 64, 4096
    KW = SK // (S * W); NL = KW // 4; NG = NL // 16
    NWG = NH * S
    nj, nw, nx, ns = 6, 2, 8, 2
    names = ["r0", "r1"] + [f"j{k}" for k in range(nj)] + [f"w{k}" for k in range(nw)] + [f"x{k}" for k in range(nx)]
    a = Asm()
    NST = 16
    def stamp(i):
        if diag: a(f"s_memrealtime s[{32+2*i}:{33+2*i}]")
    V_OFF, V_Q, V_T = 1, 2, 6
    V_S = V_T + 16
    V_ACC = V_S + 4 * NG + 4
    V_U = V_ACC + 8
    V_M, V_L, V_F, V_X = V_U + 8, V_U + 9, V_U + 10, V_U + 11
    V_Y, V_Z = V_X + 1, V_X + 2
    V_LA = V_X + 3
    V_SA = V_X + 4
    V_TK = V_X + 5
    V_MW, V_LW = V_X + 6, V_X + 7
    V_P = (V_X + 8 + 3) // 4 * 4
    V_P2 = V_P + 12
    V_OA = V_X + 8
    assert V_OA < V_P
    V_PB = V_P2 + 12
    V_RING = V_PB + 4
    NV = V_RING + 4 * R
    assert NV <= 256, NV
    def ring(i, e=None):
        b = V_RING + 4 * (i % R)
        return f"v[{b}:{b+3}]" if e is None else f"v{b+e}"
    S_HEAD, S_SPLIT, S_WAVE, S_T0, S_T1, S_C, S_SO, S_B = 16, 17, 18, 19, 20, 21, 22, 23
    S_KB, S_VB = 24, 28
    S_TK, S_CNT = 3, 96
    S_MSK = 98
    S_PJ = 56
    S_P = 64
    if not param:
        cols = parse_map(spec, names)
        ex = split_funcs(cols, nx, ns)
        for i, k in enumerate(ex): cols[f"x{k}"] ^= 1 << (26 + i)
        P = []; acc = 0
        for k in range(nj):
            acc ^= cols[f"j{k}"]; P.append(acc)
        rsh = [cols["r0"].bit_length() - 1, cols["r1"].bit_length() - 1]
    pr = lambda i: f"s{S_P+i}"
    HN = ["c0", "c1", "c2", "c3", "e0", "e1", "k0", "k1", "k2"]
    hcols = {}
    if hspec and not param:
        for item in hspec.split(","):
            h, srcs = item.split("=")
            c = 0
            for t in srcs.split("^"):
                assert t[0] in "jw"
                c ^= cols[t]
            hcols[h] = c
    a(f"""
    s_cmp_ge_u32 s2, {NWG}
    s_cbranch_scc1 L_exit
    """)
    if diag:
        for i in range(1, NST): a(f"s_mov_b32 s{32+2*i}, 0")
    stamp(0)
    a(f"""
    s_load_dwordx2 s[{S_KB}:{S_KB+1}], s[0:1], 8
    s_load_dwordx2 s[4:5], s[0:1], 0
    s_load_dwordx2 s[{S_VB}:{S_VB+1}], s[0:1], 16
    s_load_dwordx2 s[10:11], s[0:1], 24
    s_load_dwordx4 s[12:15], s[0:1], 32
    """)
    if param:
        a(f"s_load_dwordx16 s[{S_P}:{S_P+15}], s[0:1], 48")
        a(f"s_load_dwordx16 s[{S_P+16}:{S_P+31}], s[0:1], 112")
    a(f"""
    v_lshrrev_b32 v{V_X}, 6, v0
    v_and_b32 v{V_OFF}, 15, v0
    v_readfirstlane_b32 s{S_WAVE}, v{V_X}
    v_lshlrev_b32 v{V_OFF}, 4, v{V_OFF}
    v_bfe_u32 v{V_Y}, v0, 4, 1
    v_bfe_u32 v{V_Z}, v0, 5, 1
    s_mov_b32 s{S_C}, 0x3e0293ee
    s_mov_b32 s{S_MSK}, 0xffff0000
    s_mov_b32 s{S_KB+2}, 0x4000000
    s_mov_b32 s{S_KB+3}, 0x20000
    s_mov_b32 s{S_VB+2}, 0x4000000
    s_mov_b32 s{S_VB+3}, 0x20000
    """)
    if not param:
        if diag: S_PJ = 88
        for k in range(nj): a(f"s_mov_b32 s{S_PJ+k}, {P[k]}")
    def addr_calc(wc, xc, r0s, r1s):
        a(f"s_mov_b32 s{S_B}, 0")
        for k in range(nw):
            a(f"s_bitcmp1_b32 s{S_WAVE}, {k}\ns_cselect_b32 s{S_T0}, {wc(k)}, 0\ns_xor_b32 s{S_B}, s{S_B}, s{S_T0}")
        for k in range(nx):
            a(f"s_bitcmp1_b32 s2, {k}\ns_cselect_b32 s{S_T0}, {xc(k)}, 0\ns_xor_b32 s{S_B}, s{S_B}, s{S_T0}")
        used = HN if param else [h for h in HN if h in hcols]
        if used:
            if any(h[0] in "ce" for h in used): a(f"s_getreg_b32 s{S_T1}, hwreg(HW_REG_HW_ID)")
            if any(h[0] == "k" for h in used): a(f"s_getreg_b32 s{S_SO}, hwreg(HW_REG_XCC_ID)")
            for h in used:
                reg = S_SO if h[0] == "k" else S_T1
                bit = {"c": 8, "e": 13, "k": 0}[h[0]] + int(h[1])
                col = pr(18 + HN.index(h)) if param else hcols[h]
                a(f"s_bitcmp1_b32 s{reg}, {bit}\ns_cselect_b32 s{S_T0}, {col}, 0\ns_xor_b32 s{S_B}, s{S_B}, s{S_T0}")
        a(f"""
        s_bfe_u32 s{S_SPLIT}, s{S_B}, {(ns<<16)|26}
        s_and_b32 s{S_B}, s{S_B}, 0x3ffffff
        s_lshr_b32 s{S_HEAD}, s{S_B}, 20
        s_lshl_b32 s{S_T0}, s{S_HEAD}, 8
        v_add_u32 v{V_X}, s{S_T0}, v{V_OFF}
        v_lshlrev_b32 v{V_Y}, {r0s}, v{V_Y}
        v_lshlrev_b32 v{V_Z}, {r1s}, v{V_Z}
        s_lshl_b32 s{S_T0}, s{S_HEAD}, 2
        s_add_u32 s{S_T0}, s{S_T0}, s{S_SPLIT}
        s_lshl_b32 s{S_T0}, s{S_T0}, 10
        v_and_b32 v{V_SA}, 63, v0
        v_bfe_u32 v{V_OA}, v0, 4, 2
        v_lshlrev_b32 v{V_OA}, 2, v{V_OA}
        v_add_u32 v{V_OA}, v{V_OA}, v{V_OFF}
        v_or3_b32 v{V_OFF}, v{V_OFF}, v{V_Y}, v{V_Z}
        v_lshl_add_u32 v{V_SA}, v{V_SA}, 4, s{S_T0}
        """)
    if param:
        a("s_waitcnt lgkmcnt(0)")
        addr_calc(lambda k: pr(2+nj+k), lambda k: pr(2+nj+nw+k), pr(0), pr(1))
    else:
        addr_calc(lambda k: cols[f"w{k}"], lambda k: cols[f"x{k}"], str(rsh[0]), str(rsh[1]))
        a("s_waitcnt lgkmcnt(0)")
    if qpos == 0: a(f"global_load_dwordx4 v[{V_Q}:{V_Q+3}], v{V_X}, s[4:5]")
    import copy
    S_BP = 97
    LDS_ML = W * 512
    MLR = V_T
    def xreduce(op, r):
        a(f"""
        s_nop 1
        {op}_dpp v{r}, v{r}, v{r} row_ror:4 row_mask:0xf bank_mask:0xf
        s_nop 1
        {op}_dpp v{r}, v{r}, v{r} row_ror:8 row_mask:0xf bank_mask:0xf
        s_nop 0
        v_mov_b32 v{V_X}, v{r}
        s_nop 1
        v_permlane16_swap_b32 v{r}, v{V_X}
        s_nop 0
        {op} v{r}, v{r}, v{V_X}
        s_nop 0
        v_mov_b32 v{V_X}, v{r}
        s_nop 1
        v_permlane32_swap_b32 v{r}, v{V_X}
        s_nop 0
        {op} v{r}, v{r}, v{V_X}
        """)
    def poll_issue(base=None):
        base = V_P if base is None else base
        for k in range(1, 4):
            a(f"v_xor_b32 v{V_Y}, {k << 10}, v{V_SA}")
            a(f"global_load_dwordx4 v[{base+4*(k-1)}:{base+4*(k-1)+3}], v{V_Y}, s[14:15] sc1")
    def xor_cols(dst, basereg, j):
        if not param:
            J = 0
            for k in range(nj):
                if j >> k & 1: J ^= cols[f"j{k}"]
            if J: a(f"s_xor_b32 s{dst}, s{basereg}, {J}")
            else: a(f"s_mov_b32 s{dst}, s{basereg}")
        else:
            a(f"s_mov_b32 s{dst}, s{basereg}")
            cnt = [0] * nj
            for k in range(nj):
                if j >> k & 1:
                    cnt[k] ^= 1
                    if k: cnt[k-1] ^= 1
            for k in range(nj):
                if cnt[k]: a(f"s_xor_b32 s{dst}, s{dst}, {pr(2+k)}")
    def body(slots, tag):
        ns_ = len(slots)
        total = 2 * ns_
        XIDX = total - xoff
        st = dict(issued=0, seq=0, seq_of={})
        def issue(st):
            i = st["issued"]
            if i >= total: return
            isK = i < ns_
            sidx = i if isK else i - ns_
            own, j = slots[sidx]
            base = S_KB if isK else S_VB
            if own and sidx > 0 and slots[sidx-1] == (True, j-1):
                c = (j & -j).bit_length() - 1
                a(f"s_xor_b32 s{S_SO}, s{S_SO}, {pr(2+c) if param else 's%d' % (S_PJ+c)}")
            else:
                xor_cols(S_SO, S_B if own else S_BP, j)
            a(f"buffer_load_dwordx4 {ring(i)}, v{V_OFF}, s[{base}:{base+3}], s{S_SO} offen{pol}")
            st["seq_of"][i] = st["seq"]; st["seq"] += 1
            st["issued"] += 1
            if i == XIDX:
                a(f"""
                s_cmp_lg_u32 s{S_WAVE}, 0
                s_cbranch_scc1 L_notk{tag}
                s_lshl_b32 s{S_T0}, s{S_HEAD}, 2
                v_mov_b32 v{V_Y}, s{S_T0}
                v_mov_b32 v{V_Z}, 1
                v_mov_b32 v{V_TK}, -1
                s_mov_b64 exec, 1
                global_atomic_add v{V_TK}, v{V_Y}, v{V_Z}, s[12:13] sc0
                s_mov_b64 exec, -1
                """)
                a.label(f"L_notk{tag}")
        for i in range(R):
            issue(st)
            if qpos and i == qpos - 1:
                a(f"global_load_dwordx4 v[{V_Q}:{V_Q+3}], v{V_X}, s[4:5]")
                st["qseq"] = st["seq"]; st["seq"] += 1
        if cpf:
            if cpf == 2:
                a(f"""
                s_getreg_b32 s{S_T0}, hwreg(HW_REG_HW_ID, 8, 8)
                s_and_b32 s{S_T0}, s{S_T0}, 0xef
                s_cmp_lg_u32 s{S_T0}, 1
                s_cbranch_scc1 L_nopf{tag}
                """)
            a(f"""
            s_cmp_ge_u32 s{S_WAVE}, 2
            s_cbranch_scc1 L_nopf{tag}
            s_getpc_b64 s[4:5]
            """)
            a.label(f"L_pc{tag}")
            a(f"""
            s_lshl_b32 s{S_T0}, s{S_WAVE}, 13
            v_and_b32 v{V_X}, 63, v0
            v_lshl_add_u32 v{V_X}, v{V_X}, 7, s{S_T0}
            v_min_u32 v{V_X}, L_exit-L_pc{tag}, v{V_X}
            v_mov_b32 v{V_Z}, s5
            v_add_co_u32 v{V_Y}, vcc, s4, v{V_X}
            s_nop 1
            v_addc_co_u32 v{V_Z}, vcc, 0, v{V_Z}, vcc
            global_load_dword v{V_X}, v[{V_Y}:{V_Z}], off
            """)
            a.label(f"L_nopf{tag}")
        a(f"""
        s_cmp_lg_u32 s{S_WAVE}, 0
        s_cbranch_scc1 L_noclr{tag}
        v_mov_b32 v{V_P}, 0
        v_mov_b32 v{V_P+1}, 0
        v_mov_b32 v{V_P+2}, 0
        v_mov_b32 v{V_P+3}, 0
        global_store_dwordx4 v{V_SA}, v[{V_P}:{V_P+3}], s[14:15] sc1
        """)
        a.label(f"L_noclr{tag}")
        marks = {max(0, (k * total) // 8 - 1): k for k in range(1, 9)}
        def wait_for(st, i):
            n = st["seq"] - 1 - st["seq_of"][i]
            if i == 0 and qpos: n = min(n, st["seq"] - 1 - st["qseq"])
            a(f"s_waitcnt vmcnt({n})")
            if i == 0: stamp(9)
            if i in marks: stamp(marks[i])
        groups = []; p = 0
        while ns_ - p >= 16: groups.append((p, 16)); p += 16
        while p < ns_: groups.append((p, min(4, ns_ - p))); p += min(4, ns_ - p)
        sreg = V_S; where = {}
        for (p0, n) in groups:
            for jj in range(n):
                i = p0 + jj
                wait_for(st, i)
                t = V_T + jj
                a(f"v_dot2_f32_bf16 v{t}, {ring(i,0)}, v{V_Q}, 0")
                a(f"v_dot2_f32_bf16 v{t}, {ring(i,1)}, v{V_Q+1}, v{t}")
                a(f"v_dot2_f32_bf16 v{t}, {ring(i,2)}, v{V_Q+2}, v{t}")
                a(f"v_dot2_f32_bf16 v{t}, {ring(i,3)}, v{V_Q+3}, v{t}")
                issue(st)
            a("s_nop 2")
            if n == 16:
                for i in range(8):
                    a(f"v_add_f32_dpp v{V_T+i}, v{V_T+i}, v{V_T+i} row_ror:8 row_mask:0xf bank_mask:0x3")
                for i in range(8):
                    a(f"v_add_f32_dpp v{V_T+i}, v{V_T+i+8}, v{V_T+i+8} row_ror:8 row_mask:0xf bank_mask:0xc")
                for i in range(4):
                    a(f"v_add_f32_dpp v{V_T+i}, v{V_T+i}, v{V_T+i} row_half_mirror row_mask:0xf bank_mask:0x5")
                for i in range(4):
                    a(f"v_add_f32_dpp v{V_T+i}, v{V_T+i+4}, v{V_T+i+4} row_half_mirror row_mask:0xf bank_mask:0xa")
                for i in range(4):
                    a(f"v_add_f32_dpp v{V_T+i}, v{V_T+i}, v{V_T+i} quad_perm:[1,0,3,2] row_mask:0xf bank_mask:0xf")
                for i in range(4):
                    a(f"v_add_f32_dpp v{V_T+i}, v{V_T+i}, v{V_T+i} quad_perm:[2,3,0,1] row_mask:0xf bank_mask:0xf")
                for i in range(4):
                    a(f"v_mul_f32 v{sreg+i}, s{S_C}, v{V_T+i}")
                for jj in range(16): where[p0 + jj] = (sreg + (jj & 3), jj >> 2)
                sreg += 4
            else:
                T0, T1, T2, T3 = V_T, V_T+1, V_T+2, V_T+3
                a(f"""
                v_add_f32_dpp v{T0}, v{T0}, v{T0} row_ror:8 row_mask:0xf bank_mask:0x3
                v_add_f32_dpp v{T1}, v{T1}, v{T1} row_ror:8 row_mask:0xf bank_mask:0x3
                v_add_f32_dpp v{T0}, v{T2}, v{T2} row_ror:8 row_mask:0xf bank_mask:0xc
                v_add_f32_dpp v{T1}, v{T3}, v{T3} row_ror:8 row_mask:0xf bank_mask:0xc
                s_nop 0
                v_add_f32_dpp v{T0}, v{T0}, v{T0} row_half_mirror row_mask:0xf bank_mask:0x5
                v_add_f32_dpp v{T0}, v{T1}, v{T1} row_half_mirror row_mask:0xf bank_mask:0xa
                s_nop 1
                v_add_f32_dpp v{T0}, v{T0}, v{T0} quad_perm:[1,0,3,2] row_mask:0xf bank_mask:0xf
                s_nop 1
                v_add_f32_dpp v{T0}, v{T0}, v{T0} quad_perm:[2,3,0,1] row_mask:0xf bank_mask:0xf
                v_mul_f32 v{sreg}, s{S_C}, v{T0}
                """)
                if n < 4:
                    m = (0xf << n) & 0xf
                    a(f"v_mov_b32 v{T1}, 0xff800000")
                    a("s_nop 1")
                    a(f"v_mov_b32_dpp v{sreg}, v{T1} quad_perm:[0,1,2,3] row_mask:0xf bank_mask:{hex(m)}")
                for jj in range(n): where[p0 + jj] = (sreg, jj)
                sreg += 1
        n = sreg - V_S
        assert sreg <= V_ACC
        a(f"v_max_f32 v{V_M}, v{V_S}, v{V_S+1}")
        k = 2
        while k + 1 < n:
            a(f"v_max3_f32 v{V_M}, v{V_M}, v{V_S+k}, v{V_S+k+1}"); k += 2
        if k < n: a(f"v_max_f32 v{V_M}, v{V_M}, v{V_S+k}")
        xreduce("v_max_f32", V_M)
        for i in range(n): a(f"v_sub_f32 v{V_S+i}, v{V_S+i}, v{V_M}")
        for i in range(n): a(f"v_exp_f32 v{V_S+i}, v{V_S+i}")
        a("s_nop 0")
        a(f"v_add_f32 v{V_L}, v{V_S}, v{V_S+1}")
        for i in range(2, n): a(f"v_add_f32 v{V_L}, v{V_L}, v{V_S+i}")
        for e in range(8): a(f"v_mov_b32 v{V_ACC+e}, 0")
        xreduce("v_add_f32", V_L)
        assert V_M % 2 == 0 and V_L == V_M + 1
        a(f"""
        s_lshl_b32 s{S_T0}, s{S_WAVE}, 3
        s_add_u32 s{S_T0}, s{S_T0}, {LDS_ML}
        v_mov_b32 v{V_Y}, s{S_T0}
        v_lshlrev_b32 v{V_LA}, 3, v0
        ds_write_b64 v{V_Y}, v[{V_M}:{V_M+1}]
        """)
        def vload(st, j, second=False):
            i = ns_ + j
            preg, b = where[j]
            wait_for(st, i)
            if second:
                poll_issue(V_P2); st["seq"] += 3
            if pk:
                a(f"v_mov_b32_dpp v{V_PB}, v{preg} row_newbcast:{4*b} row_mask:0xf bank_mask:0xf")
            for e in range(4):
                a(f"v_lshlrev_b32 v{V_U+2*e}, 16, {ring(i,e)}")
                a(f"v_and_b32 v{V_U+2*e+1}, s{S_MSK}, {ring(i,e)}")
            issue(st)
            if pk:
                for e in range(0, 8, 2):
                    a(f"v_pk_fma_f32 v[{V_ACC+e}:{V_ACC+e+1}], v[{V_U+e}:{V_U+e+1}], v[{V_PB}:{V_PB+1}], v[{V_ACC+e}:{V_ACC+e+1}] op_sel_hi:[1,0,1]")
            else:
                for e in range(8):
                    a(f"v_fmac_f32_dpp v{V_ACC+e}, v{preg}, v{V_U+e} row_newbcast:{4*b} row_mask:0xf bank_mask:0xf")
        jx = XIDX - ns_
        for j in range(jx + 1):
            if j == midbar:
                a(f"""
                s_waitcnt lgkmcnt(0)
                s_barrier
                v_mov_b32 v{V_Y}, {LDS_ML}
                ds_read_b128 v[{MLR}:{MLR+3}], v{V_Y}
                ds_read_b128 v[{MLR+4}:{MLR+7}], v{V_Y} offset:16
                """)
            if j == midbar + 2:
                a(f"""
                s_waitcnt lgkmcnt(0)
                v_max_f32 v{V_MW}, v{MLR}, v{MLR+2}
                v_max3_f32 v{V_MW}, v{V_MW}, v{MLR+4}, v{MLR+6}
                v_sub_f32 v{MLR}, v{MLR}, v{V_MW}
                v_sub_f32 v{MLR+2}, v{MLR+2}, v{V_MW}
                v_sub_f32 v{MLR+4}, v{MLR+4}, v{V_MW}
                v_sub_f32 v{MLR+6}, v{MLR+6}, v{V_MW}
                v_sub_f32 v{V_F}, v{V_M}, v{V_MW}
                v_exp_f32 v{MLR}, v{MLR}
                v_exp_f32 v{MLR+2}, v{MLR+2}
                v_exp_f32 v{MLR+4}, v{MLR+4}
                v_exp_f32 v{MLR+6}, v{MLR+6}
                v_exp_f32 v{V_F}, v{V_F}
                v_mul_f32 v{V_LW}, v{MLR}, v{MLR+1}
                v_fmac_f32 v{V_LW}, v{MLR+2}, v{MLR+3}
                v_fmac_f32 v{V_LW}, v{MLR+4}, v{MLR+5}
                v_fmac_f32 v{V_LW}, v{MLR+6}, v{MLR+7}
                """)
            vload(st, j)
        a(f"""
        s_mov_b32 s{S_TK}, 0
        s_cmp_lg_u32 s{S_WAVE}, 0
        s_cbranch_scc1 L_rest{tag}
        v_readfirstlane_b32 s{S_TK}, v{V_TK}
        s_nop 0
        s_cmp_lg_u32 s{S_TK}, -1
        s_cbranch_scc1 L_tkok{tag}
        s_waitcnt vmcnt(0)
        v_readfirstlane_b32 s{S_TK}, v{V_TK}
        s_nop 0
L_tkok{tag}:
        s_cmp_lg_u32 s{S_TK}, {S-1}
        s_cbranch_scc1 L_rest{tag}
        """)
        stc = copy.deepcopy(st)
        poll_issue()
        stc["seq"] += 3
        for j in range(jx + 1, ns_): vload(stc, j, second=(j == ns_ - 1))
        a("s_branch L_vdone")
        a.label(f"L_rest{tag}")
        for j in range(jx + 1, ns_): vload(st, j)
    if skew == 0 and dup:
        a(f"s_bitcmp1_b32 s{S_B}, 11")
        a("s_cbranch_scc1 L_odd")
        body([(True, j) for j in range(NL)], "e")
        a("s_branch L_vdone")
        a.label("L_odd")
        body([(True, j) for j in range(NL)], "o")
    elif skew == 0:
        body([(True, j) for j in range(NL)], "a")
    else:
        if skewaddr >= 0:
            assert not param
            assert all(not (cols[n] >> skewaddr & 1) for n in names if n[0] in "rjw"), "skew address bit must be constant per workgroup"
            cand = []
            for delta in range(1, 1 << nx):
                D = 0
                for k in range(nx):
                    if delta >> k & 1: D ^= cols[f"x{k}"]
                if (D >> 20) & 63 == 0 and D >> skewaddr & 1: cand.append(D & 0x3ffffff)
            assert cand
            a(f"s_xor_b32 s{S_BP}, s{S_B}, {cand[0]}")
            a(f"s_bitcmp1_b32 s{S_B}, {skewaddr}")
        elif param:
            a(f"s_xor_b32 s{S_BP}, s{S_B}, {pr(2+nj+nw+skewbit)}")
            a(f"s_and_b32 s{S_BP}, s{S_BP}, 0x3ffffff")
            a(f"s_bitcmp1_b32 s2, {skewbit}")
        else:
            assert (cols[f'x{skewbit}'] >> 20) & 63 == 0, "skew bit must be a split bit"
            a(f"s_xor_b32 s{S_BP}, s{S_B}, {cols[f'x{skewbit}'] & 0x3ffffff}")
            a(f"s_bitcmp1_b32 s2, {skewbit}")
        a("s_cbranch_scc1 L_odd")
        body([(True, j) for j in range(NL)] + [(False, j) for j in range(NL - skew, NL)], "e")
        a("s_branch L_vdone")
        a.label("L_odd")
        body([(True, j) for j in range(NL - skew)], "o")
    a.label("L_vdone")
    a("s_nop 1")
    for e in range(4): a(f"v_permlane32_swap_b32 v{V_ACC+e}, v{V_ACC+e+4}")
    a("s_nop 0")
    for e in range(4): a(f"v_add_f32 v{V_ACC+e}, v{V_ACC+e}, v{V_ACC+e+4}")
    a("s_nop 1")
    for e in range(2): a(f"v_permlane16_swap_b32 v{V_ACC+e}, v{V_ACC+e+2}")
    a("s_nop 0")
    AC = V_U
    a(f"""
    v_add_f32 v{AC}, v{V_ACC}, v{V_ACC+2}
    v_add_f32 v{AC+1}, v{V_ACC+1}, v{V_ACC+3}
    v_mul_f32 v{AC}, v{AC}, v{V_F}
    v_mul_f32 v{AC+1}, v{AC+1}, v{V_F}
    ds_write_b64 v{V_LA}, v[{AC}:{AC+1}]
    s_cmp_lg_u32 s{S_WAVE}, 0
    s_cbranch_scc1 L_bar_exit
    v_lshlrev_b32 v{V_X}, 3, v0
    s_cmp_lg_u32 s{S_TK}, {S-1}
    s_cbranch_scc1 L_producer
    """)
    T = V_T
    B = V_RING
    def check(base, target):
        a(f"""
        v_cmp_ne_u32 vcc, 0, v{base+3}
        v_cmp_ne_u32 s[4:5], 0, v{base+7}
        v_cmp_ne_u32 s[6:7], 0, v{base+11}
        s_nop 1
        s_and_b64 vcc, vcc, s[4:5]
        s_and_b64 vcc, vcc, s[6:7]
        s_cmp_eq_u64 vcc, -1
        s_cbranch_scc1 {target}
        """)
    def factors(P):
        a(f"""
        v_max_f32 v{T}, v{V_MW}, v{P+2}
        v_max3_f32 v{T}, v{T}, v{P+6}, v{P+10}
        v_sub_f32 v{T+1}, v{V_MW}, v{T}
        v_sub_f32 v{T+2}, v{P+2}, v{T}
        v_sub_f32 v{T+3}, v{P+6}, v{T}
        v_sub_f32 v{T+4}, v{P+10}, v{T}
        v_exp_f32 v{T+1}, v{T+1}
        v_exp_f32 v{T+2}, v{T+2}
        v_exp_f32 v{T+3}, v{T+3}
        v_exp_f32 v{T+4}, v{T+4}
        s_lshl_b32 s{S_T0}, s{S_HEAD}, 8
        v_mul_f32 v{T+5}, v{T+1}, v{V_LW}
        v_mul_f32 v{T+6}, v{T+2}, v{P+3}
        v_mul_f32 v{T+7}, v{T+3}, v{P+7}
        v_mul_f32 v{T+8}, v{T+4}, v{P+11}
        v_add_f32 v{T+5}, v{T+5}, v{T+6}
        v_add_f32 v{T+7}, v{T+7}, v{T+8}
        v_mul_f32 v{T+9}, v{T+2}, v{P}
        v_add_f32 v{T+5}, v{T+5}, v{T+7}
        v_mul_f32 v{T+10}, v{T+2}, v{P+1}
        v_rcp_f32 v{T+5}, v{T+5}
        v_mul_f32 v{T+11}, v{T+3}, v{P+4}
        v_mul_f32 v{T+12}, v{T+3}, v{P+5}
        v_mul_f32 v{T+13}, v{T+4}, v{P+8}
        v_mul_f32 v{T+14}, v{T+4}, v{P+9}
        v_add_u32 v{V_Z}, s{S_T0}, v{V_OA}
        v_add_f32 v{T+11}, v{T+11}, v{T+13}
        v_add_f32 v{T+12}, v{T+12}, v{T+14}
        """)
    def own_sum():
        for w in range(W): a(f"ds_read_b64 v[{B+2*w}:{B+2*w+1}], v{V_X} offset:{512*w}")
    def own_sum2():
        a(f"""
        s_waitcnt lgkmcnt(2)
        v_add_f32 v{B}, v{B}, v{B+2}
        v_add_f32 v{B+1}, v{B+1}, v{B+3}
        s_waitcnt lgkmcnt(0)
        v_add_f32 v{B+4}, v{B+4}, v{B+6}
        v_add_f32 v{B+5}, v{B+5}, v{B+7}
        v_add_f32 v{B}, v{B}, v{B+4}
        v_add_f32 v{B+1}, v{B+1}, v{B+5}
        """)
    def final():
        a(f"""
        v_mul_f32 v{B}, v{T+1}, v{B}
        v_mul_f32 v{B+1}, v{T+1}, v{B+1}
        v_add_f32 v{B}, v{B}, v{T+9}
        v_add_f32 v{B+1}, v{B+1}, v{T+10}
        v_add_f32 v{B}, v{B}, v{T+11}
        v_add_f32 v{B+1}, v{B+1}, v{T+12}
        v_mul_f32 v{B}, v{B}, v{T+5}
        v_mul_f32 v{B+1}, v{B+1}, v{T+5}
        v_cvt_pk_bf16_f32 v{T+6}, v{B}, v{B+1}
        global_store_dword v{V_Z}, v{T+6}, s[10:11]
        """)
        stamp(13)
        if diag: a(f"s_add_u32 s{32+2*12}, s{S_CNT}, 1")
        a("s_branch L_end")
    a(f"s_mov_b32 s{S_CNT}, 0")
    a("s_waitcnt vmcnt(3)")
    check(V_P, "L_fast")
    a(f"""
    s_waitcnt lgkmcnt(0)
    s_barrier
    """)
    stamp(10)
    own_sum()
    poll_issue(V_P)
    own_sum2()
    a.label("L_poll")
    a("s_waitcnt vmcnt(3)")
    check(V_P2, "L_finB")
    a(f"""
    s_add_u32 s{S_CNT}, s{S_CNT}, 1
    s_cmp_ge_u32 s{S_CNT}, {spinmax}
    s_cbranch_scc1 L_finB
    """)
    poll_issue(V_P2)
    a("s_waitcnt vmcnt(3)")
    check(V_P, "L_finA")
    poll_issue(V_P)
    a("s_branch L_poll")
    a.label("L_finB")
    stamp(11)
    factors(V_P2)
    final()
    a.label("L_finA")
    stamp(11)
    factors(V_P)
    final()
    a.label("L_fast")
    stamp(11)
    factors(V_P)
    a(f"""
    s_waitcnt lgkmcnt(0)
    s_barrier
    """)
    stamp(10)
    own_sum()
    own_sum2()
    final()
    a.label("L_producer")
    a(f"""
    s_waitcnt lgkmcnt(0)
    s_barrier
    """)
    stamp(10)
    B4 = (B + 3) // 4 * 4
    for w in range(W): a(f"ds_read_b64 v[{B+2*w}:{B+2*w+1}], v{V_X} offset:{512*w}")
    G = V_P
    a(f"""
    v_mov_b32 v{G+2}, v{V_MW}
    v_mov_b32 v{G+3}, v{V_LW}
    s_waitcnt lgkmcnt(2)
    v_add_f32 v{B}, v{B}, v{B+2}
    v_add_f32 v{B+1}, v{B+1}, v{B+3}
    s_waitcnt lgkmcnt(0)
    v_add_f32 v{B+4}, v{B+4}, v{B+6}
    v_add_f32 v{B+5}, v{B+5}, v{B+7}
    v_add_f32 v{G}, v{B}, v{B+4}
    v_add_f32 v{G+1}, v{B+1}, v{B+5}
    global_store_dwordx4 v{V_SA}, v[{G}:{G+3}], s[14:15] sc1
    """)
    stamp(13)
    a("s_branch L_end")
    a.label("L_bar_exit")
    a(f"""
    s_waitcnt lgkmcnt(0)
    s_barrier
    """)
    stamp(10)
    a.label("L_end")
    if diag:
        a("s_waitcnt vmcnt(0)")
        stamp(15)
        a("s_waitcnt lgkmcnt(0)")
        a("s_mov_b64 exec, -1")
        a(f"s_add_u32 s44, s{S_HEAD}, 1")
        a(f"s_add_u32 s46, s{S_TK}, 1")
        a("s_getreg_b32 s60, hwreg(HW_REG_XCC_ID)")
        a("s_getreg_b32 s3, hwreg(HW_REG_HW_ID)")
        a("s_lshl_b32 s3, s3, 4")
        a("s_and_b32 s60, s60, 15")
        a("s_or_b32 s60, s60, s3")
        for i in range(NST): a(f"v_writelane_b32 v2, s{32+2*i}, {i}")
        a(f"""
        s_mul_i32 s3, s2, {W}
        s_add_u32 s3, s3, s{S_WAVE}
        s_lshl_b32 s3, s3, 6
        s_add_u32 s3, s3, 0x1000000
        v_and_b32 v3, 63, v0
        v_lshlrev_b32 v3, 2, v3
        v_add_u32 v3, s3, v3
        s_mov_b64 exec, 0xffff
        global_store_dword v3, v2, s[14:15]
        """)
    a.label("L_exit")
    a("s_endpgm")
    lds = W * 512 + W * 8
    nv = (NV + 7) // 8 * 8
    out = HEADER + f"; @launch grid=({NWG},1,1) block=({64*W},1,1) lds={lds}\n" + NOTES
    out += f""".amdgcn_target "amdgcn-amd-amdhsa--gfx950"
.text
.globl {NAME}_kernel
.p2align 8
.type {NAME}_kernel,@function
{NAME}_kernel:
"""
    out += a.text()
    out += f""".section .rodata,"a"
.p2align 6
.amdhsa_kernel {NAME}_kernel
  .amdhsa_next_free_vgpr {nv}
  .amdhsa_next_free_sgpr 100
  .amdhsa_accum_offset {nv}
  .amdhsa_group_segment_fixed_size 0
  .amdhsa_kernarg_size 48
  .amdhsa_user_sgpr_count 2
  .amdhsa_user_sgpr_kernarg_segment_ptr 1
  .amdhsa_system_sgpr_workgroup_id_x 1
  .amdhsa_float_denorm_mode_32 3
.end_amdhsa_kernel
"""
    return out

if __name__ == "__main__":
    p = argparse.ArgumentParser()
    p.add_argument("-R", type=int, default=16)
    p.add_argument("--pol", default="nt")
    p.add_argument("--diag", action="store_true")
    p.add_argument("--param", action="store_true")
    p.add_argument("--spec", default="r0,r1,j0,j1,w0,j2,w1,j3,j4,j5,x0,x1,x2,x3,x4,x5,x6,x7")
    p.add_argument("--xoff", type=int, default=4)
    p.add_argument("--midbar", type=int, default=4)
    p.add_argument("--skew", type=int, default=0)
    p.add_argument("--hspec", default="")
    p.add_argument("--skewaddr", type=int, default=-1)
    p.add_argument("--dup", action="store_true")
    p.add_argument("--cpf", type=int, default=0)
    p.add_argument("--nopk", action="store_true")
    p.add_argument("--qpos", type=int, default=0)
    p.add_argument("-o", default="-")
    args = p.parse_args()
    pol = (" " + args.pol.replace("+", " ")) if args.pol else ""
    txt = gen(args.R, pol, args.diag, args.spec, args.param, args.xoff, midbar=args.midbar, skew=args.skew, hspec=args.hspec, skewaddr=args.skewaddr, dup=args.dup, cpf=args.cpf, pk=not args.nopk, qpos=args.qpos)
    if args.o == "-": sys.stdout.write(txt)
    else: open(args.o, "w").write(txt)
```

```python
import sys, argparse
from gen4 import HEADER, NAME, Asm, parse_map, split_funcs

NOTES = """\
;
;    workgroup id only, so the result does not depend on placement.
;    cleared their slots, and polls them (bounded) until every 16-byte granule {o0, o1, max, sum} has a non-zero sum.
"""

def gen(R=16, pol=" nt", diag=False, spec=None, param=False, xoff=4, spinmax=1 << 20, midbar=4, skew=0, skewbit=0, hspec="", skewaddr=-1, dup=False, cpf=0, pk=True, qpos=0, flex=0, roll=False):
    S, W, NH, SK = 4, 4, 64, 4096
    KW = SK // (S * W); NL = KW // 4; NG = NL // 16
    NWG = NH * S
    nj, nw, nx, ns = 6, 2, 8, 2
    names = ["r0", "r1"] + [f"j{k}" for k in range(nj)] + [f"w{k}" for k in range(nw)] + [f"x{k}" for k in range(nx)]
    a = Asm()
    NST = 16
    def stamp(i):
        if diag: a(f"s_memrealtime s[{32+2*i}:{33+2*i}]")
    V_OFF, V_Q, V_T = 1, 2, 6
    V_S = V_T + 16
    V_ACC = V_S + 4 * NG + 4
    V_U = V_ACC + 8
    V_M, V_L, V_F, V_X = V_U + 8, V_U + 9, V_U + 10, V_U + 11
    V_Y, V_Z = V_X + 1, V_X + 2
    V_LA = V_X + 3
    V_SA = V_X + 4
    V_TK = V_X + 5
    V_MW, V_LW = V_X + 6, V_X + 7
    V_P = (V_X + 8 + 3) // 4 * 4
    V_P2 = V_P + 12
    V_OA = V_X + 8
    assert V_OA < V_P
    V_PB = V_P2 + 12
    V_RING = V_PB + 4
    NV = V_RING + 4 * R
    assert NV <= 256, NV
    def ring(i, e=None):
        b = V_RING + 4 * (i % R)
        return f"v[{b}:{b+3}]" if e is None else f"v{b+e}"
    S_HEAD, S_SPLIT, S_WAVE, S_T0, S_T1, S_C, S_SO, S_B = 16, 17, 18, 19, 20, 21, 22, 23
    S_KB, S_VB = 24, 28
    S_TK, S_CNT = 3, 96
    S_MSK = 98
    S_PJ = 56
    S_P = 64
    if not param:
        cols = parse_map(spec, names)
        ex = split_funcs(cols, nx, ns)
        for i, k in enumerate(ex): cols[f"x{k}"] ^= 1 << (26 + i)
        P = []; acc = 0
        for k in range(nj):
            acc ^= cols[f"j{k}"]; P.append(acc)
        rsh = [cols["r0"].bit_length() - 1, cols["r1"].bit_length() - 1]
    pr = lambda i: f"s{S_P+i}"
    HN = ["c0", "c1", "c2", "c3", "e0", "e1", "k0", "k1", "k2"]
    hcols = {}
    if hspec and not param:
        for item in hspec.split(","):
            h, srcs = item.split("=")
            c = 0
            for t in srcs.split("^"):
                assert t[0] in "jw"
                c ^= cols[t]
            hcols[h] = c
    a(f"""
    s_cmp_ge_u32 s2, {NWG}
    s_cbranch_scc1 L_exit
    """)
    if diag:
        for i in range(1, NST): a(f"s_mov_b32 s{32+2*i}, 0")
    stamp(0)
    a(f"""
    s_load_dwordx2 s[{S_KB}:{S_KB+1}], s[0:1], 8
    s_load_dwordx2 s[4:5], s[0:1], 0
    s_load_dwordx2 s[{S_VB}:{S_VB+1}], s[0:1], 16
    s_load_dwordx2 s[10:11], s[0:1], 24
    s_load_dwordx4 s[12:15], s[0:1], 32
    """)
    if param:
        a(f"s_load_dwordx16 s[{S_P}:{S_P+15}], s[0:1], 48")
        a(f"s_load_dwordx16 s[{S_P+16}:{S_P+31}], s[0:1], 112")
    a(f"""
    v_lshrrev_b32 v{V_X}, 6, v0
    v_and_b32 v{V_OFF}, 15, v0
    v_readfirstlane_b32 s{S_WAVE}, v{V_X}
    v_lshlrev_b32 v{V_OFF}, 4, v{V_OFF}
    v_bfe_u32 v{V_Y}, v0, 4, 1
    v_bfe_u32 v{V_Z}, v0, 5, 1
    s_mov_b32 s{S_C}, 0x3e0293ee
    s_mov_b32 s{S_MSK}, 0xffff0000
    s_mov_b32 s{S_KB+2}, 0x4000000
    s_mov_b32 s{S_KB+3}, 0x20000
    s_mov_b32 s{S_VB+2}, 0x4000000
    s_mov_b32 s{S_VB+3}, 0x20000
    """)
    if not param:
        if diag: S_PJ = 88
        for k in range(nj): a(f"s_mov_b32 s{S_PJ+k}, {P[k]}")
    def addr_calc(wc, xc, r0s, r1s):
        a(f"s_mov_b32 s{S_B}, 0")
        for k in range(nw):
            a(f"s_bitcmp1_b32 s{S_WAVE}, {k}\ns_cselect_b32 s{S_T0}, {wc(k)}, 0\ns_xor_b32 s{S_B}, s{S_B}, s{S_T0}")
        for k in range(nx):
            a(f"s_bitcmp1_b32 s2, {k}\ns_cselect_b32 s{S_T0}, {xc(k)}, 0\ns_xor_b32 s{S_B}, s{S_B}, s{S_T0}")
        used = HN if param else [h for h in HN if h in hcols]
        if used:
            if any(h[0] in "ce" for h in used): a(f"s_getreg_b32 s{S_T1}, hwreg(HW_REG_HW_ID)")
            if any(h[0] == "k" for h in used): a(f"s_getreg_b32 s{S_SO}, hwreg(HW_REG_XCC_ID)")
            for h in used:
                reg = S_SO if h[0] == "k" else S_T1
                bit = {"c": 8, "e": 13, "k": 0}[h[0]] + int(h[1])
                col = pr(18 + HN.index(h)) if param else hcols[h]
                a(f"s_bitcmp1_b32 s{reg}, {bit}\ns_cselect_b32 s{S_T0}, {col}, 0\ns_xor_b32 s{S_B}, s{S_B}, s{S_T0}")
        a(f"""
        s_bfe_u32 s{S_SPLIT}, s{S_B}, {(ns<<16)|26}
        s_and_b32 s{S_B}, s{S_B}, 0x3ffffff
        s_lshr_b32 s{S_HEAD}, s{S_B}, 20
        s_lshl_b32 s{S_T0}, s{S_HEAD}, 8
        v_add_u32 v{V_X}, s{S_T0}, v{V_OFF}
        v_lshlrev_b32 v{V_Y}, {r0s}, v{V_Y}
        v_lshlrev_b32 v{V_Z}, {r1s}, v{V_Z}
        s_lshl_b32 s{S_T0}, s{S_HEAD}, 2
        s_add_u32 s{S_T0}, s{S_T0}, s{S_SPLIT}
        s_lshl_b32 s{S_T0}, s{S_T0}, 10
        v_and_b32 v{V_SA}, 63, v0
        v_bfe_u32 v{V_OA}, v0, 4, 2
        v_lshlrev_b32 v{V_OA}, 2, v{V_OA}
        v_add_u32 v{V_OA}, v{V_OA}, v{V_OFF}
        v_or3_b32 v{V_OFF}, v{V_OFF}, v{V_Y}, v{V_Z}
        v_lshl_add_u32 v{V_SA}, v{V_SA}, 4, s{S_T0}
        """)
    if param:
        a("s_waitcnt lgkmcnt(0)")
        addr_calc(lambda k: pr(2+nj+k), lambda k: pr(2+nj+nw+k), pr(0), pr(1))
    else:
        addr_calc(lambda k: cols[f"w{k}"], lambda k: cols[f"x{k}"], str(rsh[0]), str(rsh[1]))
        a("s_waitcnt lgkmcnt(0)")
    if qpos == 0: a(f"global_load_dwordx4 v[{V_Q}:{V_Q+3}], v{V_X}, s[4:5]")
    import copy
    S_BP = 97
    LDS_ML = W * 512
    MLR = V_T
    def xreduce(op, r):
        a(f"""
        s_nop 1
        {op}_dpp v{r}, v{r}, v{r} row_ror:4 row_mask:0xf bank_mask:0xf
        s_nop 1
        {op}_dpp v{r}, v{r}, v{r} row_ror:8 row_mask:0xf bank_mask:0xf
        s_nop 0
        v_mov_b32 v{V_X}, v{r}
        s_nop 1
        v_permlane16_swap_b32 v{r}, v{V_X}
        s_nop 0
        {op} v{r}, v{r}, v{V_X}
        s_nop 0
        v_mov_b32 v{V_X}, v{r}
        s_nop 1
        v_permlane32_swap_b32 v{r}, v{V_X}
        s_nop 0
        {op} v{r}, v{r}, v{V_X}
        """)
    def poll_issue(base=None):
        base = V_P if base is None else base
        for k in range(1, 4):
            a(f"v_xor_b32 v{V_Y}, {k << 10}, v{V_SA}")
            a(f"global_load_dwordx4 v[{base+4*(k-1)}:{base+4*(k-1)+3}], v{V_Y}, s[14:15] sc1")
    def xor_cols(dst, basereg, j):
        if not param:
            J = 0
            for k in range(nj):
                if j >> k & 1: J ^= cols[f"j{k}"]
            if J: a(f"s_xor_b32 s{dst}, s{basereg}, {J}")
            else: a(f"s_mov_b32 s{dst}, s{basereg}")
        else:
            a(f"s_mov_b32 s{dst}, s{basereg}")
            cnt = [0] * nj
            for k in range(nj):
                if j >> k & 1:
                    cnt[k] ^= 1
                    if k: cnt[k-1] ^= 1
            for k in range(nj):
                if cnt[k]: a(f"s_xor_b32 s{dst}, s{dst}, {pr(2+k)}")
    def body(slots, tag):
        ns_ = len(slots)
        total = 2 * ns_
        XIDX = total - xoff
        st = dict(issued=0, seq=0, seq_of={})
        def issue(st):
            i = st["issued"]
            if i >= total: return
            isK = i < ns_
            sidx = i if isK else i - ns_
            own, j = slots[sidx]
            base = S_KB if isK else S_VB
            if own and sidx > 0 and slots[sidx-1] == (True, j-1):
                c = (j & -j).bit_length() - 1
                a(f"s_xor_b32 s{S_SO}, s{S_SO}, {pr(2+c) if param else 's%d' % (S_PJ+c)}")
            else:
                xor_cols(S_SO, S_B if own else S_BP, j)
            a(f"buffer_load_dwordx4 {ring(i)}, v{V_OFF}, s[{base}:{base+3}], s{S_SO} offen{pol}")
            st["seq_of"][i] = st["seq"]; st["seq"] += 1
            st["issued"] += 1
            if i == XIDX:
                a(f"""
                s_cmp_lg_u32 s{S_WAVE}, 0
                s_cbranch_scc1 L_notk{tag}
                s_lshl_b32 s{S_T0}, s{S_HEAD}, 2
                v_mov_b32 v{V_Y}, s{S_T0}
                v_mov_b32 v{V_Z}, 1
                v_mov_b32 v{V_TK}, -1
                s_mov_b64 exec, 1
                global_atomic_add v{V_TK}, v{V_Y}, v{V_Z}, s[12:13] sc0
                s_mov_b64 exec, -1
                """)
                a.label(f"L_notk{tag}")
        for i in range(R):
            issue(st)
            if qpos and i == qpos - 1:
                a(f"global_load_dwordx4 v[{V_Q}:{V_Q+3}], v{V_X}, s[4:5]")
                st["qseq"] = st["seq"]; st["seq"] += 1
        if cpf:
            if cpf == 2:
                a(f"""
                s_getreg_b32 s{S_T0}, hwreg(HW_REG_HW_ID, 8, 8)
                s_and_b32 s{S_T0}, s{S_T0}, 0xef
                s_cmp_lg_u32 s{S_T0}, 1
                s_cbranch_scc1 L_nopf{tag}
                """)
            a(f"""
            s_cmp_ge_u32 s{S_WAVE}, 2
            s_cbranch_scc1 L_nopf{tag}
            s_getpc_b64 s[4:5]
            """)
            a.label(f"L_pc{tag}")
            a(f"""
            s_lshl_b32 s{S_T0}, s{S_WAVE}, 13
            v_and_b32 v{V_X}, 63, v0
            v_lshl_add_u32 v{V_X}, v{V_X}, 7, s{S_T0}
            v_min_u32 v{V_X}, L_exit-L_pc{tag}, v{V_X}
            v_mov_b32 v{V_Z}, s5
            v_add_co_u32 v{V_Y}, vcc, s4, v{V_X}
            s_nop 1
            v_addc_co_u32 v{V_Z}, vcc, 0, v{V_Z}, vcc
            global_load_dword v{V_X}, v[{V_Y}:{V_Z}], off
            """)
            a.label(f"L_nopf{tag}")
        a(f"""
        s_cmp_lg_u32 s{S_WAVE}, 0
        s_cbranch_scc1 L_noclr{tag}
        v_mov_b32 v{V_P}, 0
        v_mov_b32 v{V_P+1}, 0
        v_mov_b32 v{V_P+2}, 0
        v_mov_b32 v{V_P+3}, 0
        global_store_dwordx4 v{V_SA}, v[{V_P}:{V_P+3}], s[14:15] sc1
        """)
        a.label(f"L_noclr{tag}")
        marks = {max(0, (k * total) // 8 - 1): k for k in range(1, 9)}
        def wait_for(st, i):
            n = st["seq"] - 1 - st["seq_of"][i]
            if i == 0 and qpos: n = min(n, st["seq"] - 1 - st["qseq"])
            a(f"s_waitcnt vmcnt({n})")
            if i == 0: stamp(9)
            if i in marks: stamp(marks[i])
        groups = []; p = 0
        while ns_ - p >= 16: groups.append((p, 16)); p += 16
        while p < ns_: groups.append((p, min(4, ns_ - p))); p += min(4, ns_ - p)
        sreg = V_S; where = {}
        for (p0, n) in groups:
            for jj in range(n):
                i = p0 + jj
                wait_for(st, i)
                t = V_T + jj
                a(f"v_dot2_f32_bf16 v{t}, {ring(i,0)}, v{V_Q}, 0")
                a(f"v_dot2_f32_bf16 v{t}, {ring(i,1)}, v{V_Q+1}, v{t}")
                a(f"v_dot2_f32_bf16 v{t}, {ring(i,2)}, v{V_Q+2}, v{t}")
                a(f"v_dot2_f32_bf16 v{t}, {ring(i,3)}, v{V_Q+3}, v{t}")
                issue(st)
            a("s_nop 2")
            if n == 16:
                for i in range(8):
                    a(f"v_add_f32_dpp v{V_T+i}, v{V_T+i}, v{V_T+i} row_ror:8 row_mask:0xf bank_mask:0x3")
                for i in range(8):
                    a(f"v_add_f32_dpp v{V_T+i}, v{V_T+i+8}, v{V_T+i+8} row_ror:8 row_mask:0xf bank_mask:0xc")
                for i in range(4):
                    a(f"v_add_f32_dpp v{V_T+i}, v{V_T+i}, v{V_T+i} row_half_mirror row_mask:0xf bank_mask:0x5")
                for i in range(4):
                    a(f"v_add_f32_dpp v{V_T+i}, v{V_T+i+4}, v{V_T+i+4} row_half_mirror row_mask:0xf bank_mask:0xa")
                for i in range(4):
                    a(f"v_add_f32_dpp v{V_T+i}, v{V_T+i}, v{V_T+i} quad_perm:[1,0,3,2] row_mask:0xf bank_mask:0xf")
                for i in range(4):
                    a(f"v_add_f32_dpp v{V_T+i}, v{V_T+i}, v{V_T+i} quad_perm:[2,3,0,1] row_mask:0xf bank_mask:0xf")
                for i in range(4):
                    a(f"v_mul_f32 v{sreg+i}, s{S_C}, v{V_T+i}")
                for jj in range(16): where[p0 + jj] = (sreg + (jj & 3), jj >> 2)
                sreg += 4
            else:
                T0, T1, T2, T3 = V_T, V_T+1, V_T+2, V_T+3
                a(f"""
                v_add_f32_dpp v{T0}, v{T0}, v{T0} row_ror:8 row_mask:0xf bank_mask:0x3
                v_add_f32_dpp v{T1}, v{T1}, v{T1} row_ror:8 row_mask:0xf bank_mask:0x3
                v_add_f32_dpp v{T0}, v{T2}, v{T2} row_ror:8 row_mask:0xf bank_mask:0xc
                v_add_f32_dpp v{T1}, v{T3}, v{T3} row_ror:8 row_mask:0xf bank_mask:0xc
                s_nop 0
                v_add_f32_dpp v{T0}, v{T0}, v{T0} row_half_mirror row_mask:0xf bank_mask:0x5
                v_add_f32_dpp v{T0}, v{T1}, v{T1} row_half_mirror row_mask:0xf bank_mask:0xa
                s_nop 1
                v_add_f32_dpp v{T0}, v{T0}, v{T0} quad_perm:[1,0,3,2] row_mask:0xf bank_mask:0xf
                s_nop 1
                v_add_f32_dpp v{T0}, v{T0}, v{T0} quad_perm:[2,3,0,1] row_mask:0xf bank_mask:0xf
                v_mul_f32 v{sreg}, s{S_C}, v{T0}
                """)
                if n < 4:
                    m = (0xf << n) & 0xf
                    a(f"v_mov_b32 v{T1}, 0xff800000")
                    a("s_nop 1")
                    a(f"v_mov_b32_dpp v{sreg}, v{T1} quad_perm:[0,1,2,3] row_mask:0xf bank_mask:{hex(m)}")
                for jj in range(n): where[p0 + jj] = (sreg, jj)
                sreg += 1
        n = sreg - V_S
        assert sreg <= V_ACC
        a(f"v_max_f32 v{V_M}, v{V_S}, v{V_S+1}")
        k = 2
        while k + 1 < n:
            a(f"v_max3_f32 v{V_M}, v{V_M}, v{V_S+k}, v{V_S+k+1}"); k += 2
        if k < n: a(f"v_max_f32 v{V_M}, v{V_M}, v{V_S+k}")
        xreduce("v_max_f32", V_M)
        for i in range(n): a(f"v_sub_f32 v{V_S+i}, v{V_S+i}, v{V_M}")
        for i in range(n): a(f"v_exp_f32 v{V_S+i}, v{V_S+i}")
        a("s_nop 0")
        a(f"v_add_f32 v{V_L}, v{V_S}, v{V_S+1}")
        for i in range(2, n): a(f"v_add_f32 v{V_L}, v{V_L}, v{V_S+i}")
        for e in range(8): a(f"v_mov_b32 v{V_ACC+e}, 0")
        xreduce("v_add_f32", V_L)
        assert V_M % 2 == 0 and V_L == V_M + 1
        a(f"""
        s_lshl_b32 s{S_T0}, s{S_WAVE}, 3
        s_add_u32 s{S_T0}, s{S_T0}, {LDS_ML}
        v_mov_b32 v{V_Y}, s{S_T0}
        v_lshlrev_b32 v{V_LA}, 3, v0
        ds_write_b64 v{V_Y}, v[{V_M}:{V_M+1}]
        """)
        def vload(st, j, second=False):
            i = ns_ + j
            preg, b = where[j]
            wait_for(st, i)
            if second:
                poll_issue(V_P2); st["seq"] += 3
            if pk:
                a(f"v_mov_b32_dpp v{V_PB}, v{preg} row_newbcast:{4*b} row_mask:0xf bank_mask:0xf")
            for e in range(4):
                a(f"v_lshlrev_b32 v{V_U+2*e}, 16, {ring(i,e)}")
                a(f"v_and_b32 v{V_U+2*e+1}, s{S_MSK}, {ring(i,e)}")
            issue(st)
            if pk:
                for e in range(0, 8, 2):
                    a(f"v_pk_fma_f32 v[{V_ACC+e}:{V_ACC+e+1}], v[{V_U+e}:{V_U+e+1}], v[{V_PB}:{V_PB+1}], v[{V_ACC+e}:{V_ACC+e+1}] op_sel_hi:[1,0,1]")
            else:
                for e in range(8):
                    a(f"v_fmac_f32_dpp v{V_ACC+e}, v{preg}, v{V_U+e} row_newbcast:{4*b} row_mask:0xf bank_mask:0xf")
        jx = XIDX - ns_
        for j in range(jx + 1):
            if j == midbar:
                a(f"""
                s_waitcnt lgkmcnt(0)
                s_barrier
                v_mov_b32 v{V_Y}, {LDS_ML}
                ds_read_b128 v[{MLR}:{MLR+3}], v{V_Y}
                ds_read_b128 v[{MLR+4}:{MLR+7}], v{V_Y} offset:16
                """)
            if j == midbar + 2:
                a(f"""
                s_waitcnt lgkmcnt(0)
                v_max_f32 v{V_MW}, v{MLR}, v{MLR+2}
                v_max3_f32 v{V_MW}, v{V_MW}, v{MLR+4}, v{MLR+6}
                v_sub_f32 v{MLR}, v{MLR}, v{V_MW}
                v_sub_f32 v{MLR+2}, v{MLR+2}, v{V_MW}
                v_sub_f32 v{MLR+4}, v{MLR+4}, v{V_MW}
                v_sub_f32 v{MLR+6}, v{MLR+6}, v{V_MW}
                v_sub_f32 v{V_F}, v{V_M}, v{V_MW}
                v_exp_f32 v{MLR}, v{MLR}
                v_exp_f32 v{MLR+2}, v{MLR+2}
                v_exp_f32 v{MLR+4}, v{MLR+4}
                v_exp_f32 v{MLR+6}, v{MLR+6}
                v_exp_f32 v{V_F}, v{V_F}
                v_mul_f32 v{V_LW}, v{MLR}, v{MLR+1}
                v_fmac_f32 v{V_LW}, v{MLR+2}, v{MLR+3}
                v_fmac_f32 v{V_LW}, v{MLR+4}, v{MLR+5}
                v_fmac_f32 v{V_LW}, v{MLR+6}, v{MLR+7}
                """)
            vload(st, j)
        a(f"""
        s_mov_b32 s{S_TK}, 0
        s_cmp_lg_u32 s{S_WAVE}, 0
        s_cbranch_scc1 L_rest{tag}
        v_readfirstlane_b32 s{S_TK}, v{V_TK}
        s_nop 0
        s_cmp_lg_u32 s{S_TK}, -1
        s_cbranch_scc1 L_tkok{tag}
        s_waitcnt vmcnt(0)
        v_readfirstlane_b32 s{S_TK}, v{V_TK}
        s_nop 0
L_tkok{tag}:
        s_cmp_lg_u32 s{S_TK}, {S-1}
        s_cbranch_scc1 L_rest{tag}
        """)
        stc = copy.deepcopy(st)
        poll_issue()
        stc["seq"] += 3
        for j in range(jx + 1, ns_): vload(stc, j, second=(j == ns_ - 1))
        a("s_branch L_vdone")
        a.label(f"L_rest{tag}")
        for j in range(jx + 1, ns_): vload(st, j)
    def flexbody(d, tag="f"):
        NK = NL + d
        total = 2 * NK
        XIDX = total - xoff
        ops = []
        for j in range(NL): ops.append((True, True, j, j >= NL - d, j))
        for t, j in enumerate(range(NL - d, NL)): ops.append((True, False, j, True, NL + t))
        for j in range(NL - d, NL): ops.append((False, True, j, True, j))
        for t, j in enumerate(range(NL - d, NL)): ops.append((False, False, j, True, NL + t))
        for j in range(NL - d): ops.append((False, True, j, False, j))
        assert len(ops) == total
        st = dict(issued=0, nall=0, ncom=0, at={})
        lab = [0]
        def newlab():
            lab[0] += 1
            return f"L_fx{lab[0]}"
        def issue(st):
            i = st["issued"]
            if i >= total: return
            isK, own, j, opt, kpos = ops[i]
            if opt:
                L = newlab(); a(f"s_cbranch_vccz {L}")
            base = S_KB if isK else S_VB
            prev = ops[i-1] if i else None
            if prev and own and prev[0] == isK and prev[1] and prev[2] == j - 1 and (opt or not prev[3]):
                c = (j & -j).bit_length() - 1
                a(f"s_xor_b32 s{S_SO}, s{S_SO}, s{S_PJ+c}")
            else:
                xor_cols(S_SO, S_B if own else S_BP, j)
            a(f"buffer_load_dwordx4 {ring(i)}, v{V_OFF}, s[{base}:{base+3}], s{S_SO} offen{pol}")
            if opt: a.label(L)
            st["nall"] += 1
            if not opt: st["ncom"] += 1
            st["at"][i] = (st["nall"], st["ncom"])
            st["issued"] += 1
            if i == XIDX:
                a(f"""
                s_cmp_lg_u32 s{S_WAVE}, 0
                s_cbranch_scc1 L_notk{tag}
                s_lshl_b32 s{S_T0}, s{S_HEAD}, 2
                v_mov_b32 v{V_Y}, s{S_T0}
                v_mov_b32 v{V_Z}, 1
                v_mov_b32 v{V_TK}, -1
                s_mov_b64 exec, 1
                global_atomic_add v{V_TK}, v{V_Y}, v{V_Z}, s[12:13] sc0
                s_mov_b64 exec, -1
                """)
                a.label(f"L_notk{tag}")
        def extra(st, n):
            st["nall"] += n; st["ncom"] += n
        for i in range(R):
            assert not ops[i][3]
            issue(st)
        a(f"""
        s_cmp_lg_u32 s{S_WAVE}, 0
        s_cbranch_scc1 L_noclr{tag}
        v_mov_b32 v{V_P}, 0
        v_mov_b32 v{V_P+1}, 0
        v_mov_b32 v{V_P+2}, 0
        v_mov_b32 v{V_P+3}, 0
        global_store_dwordx4 v{V_SA}, v[{V_P}:{V_P+3}], s[14:15] sc1
        """)
        a.label(f"L_noclr{tag}")
        marks = {max(0, (k * total) // 8 - 1): k for k in range(1, 9)}
        def wait_only(st, i):
            al, co = st["at"][i]
            n = (st["nall"] - al) if ops[i][3] else (st["ncom"] - co)
            a(f"s_waitcnt vmcnt({n})")
        def stamps_for(i):
            if i == 0: stamp(9)
            if i in marks: stamp(marks[i])
        def kconsume(i, t):
            opt = ops[i][3]
            if opt:
                L = newlab(); a(f"s_cbranch_vccz {L}")
            wait_only(st, i)
            a(f"v_dot2_f32_bf16 v{t}, {ring(i,0)}, v{V_Q}, 0")
            a(f"v_dot2_f32_bf16 v{t}, {ring(i,1)}, v{V_Q+1}, v{t}")
            a(f"v_dot2_f32_bf16 v{t}, {ring(i,2)}, v{V_Q+2}, v{t}")
            a(f"v_dot2_f32_bf16 v{t}, {ring(i,3)}, v{V_Q+3}, v{t}")
            if opt: a.label(L)
            stamps_for(i)
            issue(st)
        sreg = V_S; where = {}
        for p0 in range(0, NL, 16):
            for jj in range(16): kconsume(p0 + jj, V_T + jj)
            a("s_nop 2")
            for i in range(8):
                a(f"v_add_f32_dpp v{V_T+i}, v{V_T+i}, v{V_T+i} row_ror:8 row_mask:0xf bank_mask:0x3")
            for i in range(8):
                a(f"v_add_f32_dpp v{V_T+i}, v{V_T+i+8}, v{V_T+i+8} row_ror:8 row_mask:0xf bank_mask:0xc")
            for i in range(4):
                a(f"v_add_f32_dpp v{V_T+i}, v{V_T+i}, v{V_T+i} row_half_mirror row_mask:0xf bank_mask:0x5")
            for i in range(4):
                a(f"v_add_f32_dpp v{V_T+i}, v{V_T+i+4}, v{V_T+i+4} row_half_mirror row_mask:0xf bank_mask:0xa")
            for i in range(4):
                a(f"v_add_f32_dpp v{V_T+i}, v{V_T+i}, v{V_T+i} quad_perm:[1,0,3,2] row_mask:0xf bank_mask:0xf")
            for i in range(4):
                a(f"v_add_f32_dpp v{V_T+i}, v{V_T+i}, v{V_T+i} quad_perm:[2,3,0,1] row_mask:0xf bank_mask:0xf")
            for i in range(4):
                a(f"v_mul_f32 v{sreg+i}, s{S_C}, v{V_T+i}")
            for jj in range(16): where[p0 + jj] = (sreg + (jj & 3), jj >> 2)
            sreg += 4
        assert d <= 4
        L = newlab()
        a(f"s_cbranch_vccnz {L}")
        a(f"v_mov_b32 v{V_T+15}, 0xff800000")
        a("s_nop 1")
        for kpos in range(NL - d, NL):
            r, b = where[kpos]
            a(f"v_mov_b32_dpp v{r}, v{V_T+15} quad_perm:[0,1,2,3] row_mask:0xf bank_mask:{hex(1 << b)}")
        a.label(L)
        for t in range(d): kconsume(NL + t, V_T + t)
        Ls, Lj = newlab(), newlab()
        T0, T1, T2, T3 = V_T, V_T+1, V_T+2, V_T+3
        a(f"s_cbranch_vccz {Ls}")
        a(f"""
        s_nop 2
        v_add_f32_dpp v{T0}, v{T0}, v{T0} row_ror:8 row_mask:0xf bank_mask:0x3
        v_add_f32_dpp v{T1}, v{T1}, v{T1} row_ror:8 row_mask:0xf bank_mask:0x3
        v_add_f32_dpp v{T0}, v{T2}, v{T2} row_ror:8 row_mask:0xf bank_mask:0xc
        v_add_f32_dpp v{T1}, v{T3}, v{T3} row_ror:8 row_mask:0xf bank_mask:0xc
        s_nop 0
        v_add_f32_dpp v{T0}, v{T0}, v{T0} row_half_mirror row_mask:0xf bank_mask:0x5
        v_add_f32_dpp v{T0}, v{T1}, v{T1} row_half_mirror row_mask:0xf bank_mask:0xa
        s_nop 1
        v_add_f32_dpp v{T0}, v{T0}, v{T0} quad_perm:[1,0,3,2] row_mask:0xf bank_mask:0xf
        s_nop 1
        v_add_f32_dpp v{T0}, v{T0}, v{T0} quad_perm:[2,3,0,1] row_mask:0xf bank_mask:0xf
        v_mul_f32 v{sreg}, s{S_C}, v{T0}
        """)
        if d < 4:
            m = (0xf << d) & 0xf
            a(f"v_mov_b32 v{T1}, 0xff800000")
            a("s_nop 1")
            a(f"v_mov_b32_dpp v{sreg}, v{T1} quad_perm:[0,1,2,3] row_mask:0xf bank_mask:{hex(m)}")
        a(f"s_branch {Lj}")
        a.label(Ls)
        a(f"v_mov_b32 v{sreg}, 0xff800000")
        a.label(Lj)
        for t in range(d): where[NL + t] = (sreg, t)
        sreg += 1
        n = sreg - V_S
        assert sreg <= V_ACC
        a(f"v_max_f32 v{V_M}, v{V_S}, v{V_S+1}")
        k = 2
        while k + 1 < n:
            a(f"v_max3_f32 v{V_M}, v{V_M}, v{V_S+k}, v{V_S+k+1}"); k += 2
        if k < n: a(f"v_max_f32 v{V_M}, v{V_M}, v{V_S+k}")
        xreduce("v_max_f32", V_M)
        for i in range(n): a(f"v_sub_f32 v{V_S+i}, v{V_S+i}, v{V_M}")
        for i in range(n): a(f"v_exp_f32 v{V_S+i}, v{V_S+i}")
        a("s_nop 0")
        a(f"v_add_f32 v{V_L}, v{V_S}, v{V_S+1}")
        for i in range(2, n): a(f"v_add_f32 v{V_L}, v{V_L}, v{V_S+i}")
        for e in range(8): a(f"v_mov_b32 v{V_ACC+e}, 0")
        xreduce("v_add_f32", V_L)
        a(f"""
        s_lshl_b32 s{S_T0}, s{S_WAVE}, 3
        s_add_u32 s{S_T0}, s{S_T0}, {LDS_ML}
        v_mov_b32 v{V_Y}, s{S_T0}
        v_lshlrev_b32 v{V_LA}, 3, v0
        ds_write_b64 v{V_Y}, v[{V_M}:{V_M+1}]
        """)
        def vload(st, i, second=False):
            isK, own, j, opt, kpos = ops[i]
            preg, b = where[kpos]
            if opt:
                L = newlab(); a(f"s_cbranch_vccz {L}")
            wait_only(st, i)
            if second:
                poll_issue(V_P2); extra(st, 3)
            a(f"v_mov_b32_dpp v{V_PB}, v{preg} row_newbcast:{4*b} row_mask:0xf bank_mask:0xf")
            for e in range(4):
                a(f"v_lshlrev_b32 v{V_U+2*e}, 16, {ring(i,e)}")
                a(f"v_and_b32 v{V_U+2*e+1}, s{S_MSK}, {ring(i,e)}")
            if opt: a.label(L)
            stamps_for(i)
            issue(st)
            if opt:
                L = newlab(); a(f"s_cbranch_vccz {L}")
            for e in range(0, 8, 2):
                a(f"v_pk_fma_f32 v[{V_ACC+e}:{V_ACC+e+1}], v[{V_U+e}:{V_U+e+1}], v[{V_PB}:{V_PB+1}], v[{V_ACC+e}:{V_ACC+e+1}] op_sel_hi:[1,0,1]")
            if opt: a.label(L)
        assert midbar >= 2 * d
        for i in range(NK, XIDX + 1):
            j = i - NK
            if j == midbar:
                a(f"""
                s_waitcnt lgkmcnt(0)
                s_barrier
                v_mov_b32 v{V_Y}, {LDS_ML}
                ds_read_b128 v[{MLR}:{MLR+3}], v{V_Y}
                ds_read_b128 v[{MLR+4}:{MLR+7}], v{V_Y} offset:16
                """)
            if j == midbar + 2:
                a(f"""
                s_waitcnt lgkmcnt(0)
                v_max_f32 v{V_MW}, v{MLR}, v{MLR+2}
                v_max3_f32 v{V_MW}, v{V_MW}, v{MLR+4}, v{MLR+6}
                v_sub_f32 v{MLR}, v{MLR}, v{V_MW}
                v_sub_f32 v{MLR+2}, v{MLR+2}, v{V_MW}
                v_sub_f32 v{MLR+4}, v{MLR+4}, v{V_MW}
                v_sub_f32 v{MLR+6}, v{MLR+6}, v{V_MW}
                v_sub_f32 v{V_F}, v{V_M}, v{V_MW}
                v_exp_f32 v{MLR}, v{MLR}
                v_exp_f32 v{MLR+2}, v{MLR+2}
                v_exp_f32 v{MLR+4}, v{MLR+4}
                v_exp_f32 v{MLR+6}, v{MLR+6}
                v_exp_f32 v{V_F}, v{V_F}
                v_mul_f32 v{V_LW}, v{MLR}, v{MLR+1}
                v_fmac_f32 v{V_LW}, v{MLR+2}, v{MLR+3}
                v_fmac_f32 v{V_LW}, v{MLR+4}, v{MLR+5}
                v_fmac_f32 v{V_LW}, v{MLR+6}, v{MLR+7}
                """)
            vload(st, i)
        a(f"""
        s_mov_b32 s{S_TK}, 0
        s_cmp_lg_u32 s{S_WAVE}, 0
        s_cbranch_scc1 L_rest{tag}
        v_readfirstlane_b32 s{S_TK}, v{V_TK}
        s_nop 0
        s_cmp_lg_u32 s{S_TK}, -1
        s_cbranch_scc1 L_tkok{tag}
        s_waitcnt vmcnt(0)
        v_readfirstlane_b32 s{S_TK}, v{V_TK}
        s_nop 0
        """)
        a.label(f"L_tkok{tag}")
        a(f"""
        s_cmp_lg_u32 s{S_TK}, {S-1}
        s_cbranch_scc1 L_rest{tag}
        """)
        stc = copy.deepcopy(st)
        poll_issue()
        extra(stc, 3)
        for i in range(XIDX + 1, total): vload(stc, i, second=(i == total - 1))
        a("s_branch L_vdone")
        a.label(f"L_rest{tag}")
        for i in range(XIDX + 1, total): vload(st, i)
    def rolledbody(tag="r"):
        assert R == 16 and NL == 64 and not param and xoff <= 16 and pk
        total = 2 * NL
        S_G, S_STEP, S_TOG = (62, 63, 54) if not diag else (80, 81, 82)
        S_NX = 32 if not diag else 72
        def ld(slot, srd):
            a(f"buffer_load_dwordx4 {ring(slot)}, v{V_OFF}, s[{srd}:{srd+3}], s{S_SO} offen{pol}")
        def step(jj):
            a(f"s_xor_b32 s{S_SO}, s{S_SO}, " + (f"s{S_STEP}" if jj == 0 else f"s{S_PJ + (jj & -jj).bit_length() - 1}"))
        a(f"s_mov_b32 s{S_SO}, s{S_B}")
        ld(0, S_KB)
        for jj in range(1, 16):
            step(jj); ld(jj, S_KB)
        a(f"""
        s_mov_b32 s{S_NX}, s{S_KB}
        s_mov_b32 s{S_NX+1}, s{S_KB+1}
        s_mov_b32 s{S_NX+2}, 0x4000000
        s_mov_b32 s{S_NX+3}, 0x20000
        s_mov_b32 s{S_STEP}, s{S_PJ+4}
        s_xor_b32 s{S_TOG}, s{S_PJ+4}, s{S_PJ+5}
        s_mov_b32 s{S_G}, 0
        s_cmp_lg_u32 s{S_WAVE}, 0
        s_cbranch_scc1 L_noclr{tag}
        v_mov_b32 v{V_P}, 0
        v_mov_b32 v{V_P+1}, 0
        v_mov_b32 v{V_P+2}, 0
        v_mov_b32 v{V_P+3}, 0
        global_store_dwordx4 v{V_SA}, v[{V_P}:{V_P+3}], s[14:15] sc1
        """)
        a.label(f"L_noclr{tag}")
        a.label("L_kloop")
        a(f"""
        s_cmp_lg_u32 s{S_G}, 3
        s_cbranch_scc1 L_knosw
        s_mov_b32 s{S_NX}, s{S_VB}
        s_mov_b32 s{S_NX+1}, s{S_VB+1}
        """)
        a.label("L_knosw")
        for jj in range(16):
            a("s_waitcnt vmcnt(15)")
            t = V_T + jj
            a(f"v_dot2_f32_bf16 v{t}, {ring(jj,0)}, v{V_Q}, 0")
            a(f"v_dot2_f32_bf16 v{t}, {ring(jj,1)}, v{V_Q+1}, v{t}")
            a(f"v_dot2_f32_bf16 v{t}, {ring(jj,2)}, v{V_Q+2}, v{t}")
            a(f"v_dot2_f32_bf16 v{t}, {ring(jj,3)}, v{V_Q+3}, v{t}")
            step(jj); ld(jj, S_NX)
        a(f"s_xor_b32 s{S_STEP}, s{S_STEP}, s{S_TOG}")
        for i in range(3): a(f"v_mov_b32 v{V_S+i}, v{V_S+4+i}")
        for i in range(8):
            a(f"v_add_f32_dpp v{V_T+i}, v{V_T+i}, v{V_T+i} row_ror:8 row_mask:0xf bank_mask:0x3")
        for i in range(3, 12): a(f"v_mov_b32 v{V_S+i}, v{V_S+4+i}")
        for i in range(8):
            a(f"v_add_f32_dpp v{V_T+i}, v{V_T+i+8}, v{V_T+i+8} row_ror:8 row_mask:0xf bank_mask:0xc")
        for i in range(4):
            a(f"v_add_f32_dpp v{V_T+i}, v{V_T+i}, v{V_T+i} row_half_mirror row_mask:0xf bank_mask:0x5")
        for i in range(4):
            a(f"v_add_f32_dpp v{V_T+i}, v{V_T+i+4}, v{V_T+i+4} row_half_mirror row_mask:0xf bank_mask:0xa")
        for i in range(4):
            a(f"v_add_f32_dpp v{V_T+i}, v{V_T+i}, v{V_T+i} quad_perm:[1,0,3,2] row_mask:0xf bank_mask:0xf")
        for i in range(4):
            a(f"v_add_f32_dpp v{V_T+i}, v{V_T+i}, v{V_T+i} quad_perm:[2,3,0,1] row_mask:0xf bank_mask:0xf")
        a(f"s_add_u32 s{S_G}, s{S_G}, 1")
        for i in range(4):
            a(f"v_mul_f32 v{V_S+12+i}, s{S_C}, v{V_T+i}")
        a(f"""
        s_cmp_lt_u32 s{S_G}, 4
        s_cbranch_scc1 L_kloop
        """)
        n = 16
        a(f"v_max_f32 v{V_M}, v{V_S}, v{V_S+1}")
        for k in range(2, n, 2): a(f"v_max3_f32 v{V_M}, v{V_M}, v{V_S+k}, v{V_S+k+1}")
        xreduce("v_max_f32", V_M)
        for i in range(n): a(f"v_sub_f32 v{V_S+i}, v{V_S+i}, v{V_M}")
        for i in range(n): a(f"v_exp_f32 v{V_S+i}, v{V_S+i}")
        a("s_nop 0")
        a(f"v_add_f32 v{V_L}, v{V_S}, v{V_S+1}")
        for i in range(2, n): a(f"v_add_f32 v{V_L}, v{V_L}, v{V_S+i}")
        for e in range(8): a(f"v_mov_b32 v{V_ACC+e}, 0")
        xreduce("v_add_f32", V_L)
        a(f"""
        s_lshl_b32 s{S_T0}, s{S_WAVE}, 3
        s_add_u32 s{S_T0}, s{S_T0}, {LDS_ML}
        v_mov_b32 v{V_Y}, s{S_T0}
        v_lshlrev_b32 v{V_LA}, 3, v0
        ds_write_b64 v{V_Y}, v[{V_M}:{V_M+1}]
        s_mov_b32 s{S_G}, 0
        s_waitcnt lgkmcnt(0)
        s_barrier
        v_mov_b32 v{V_Y}, {LDS_ML}
        ds_read_b128 v[{MLR}:{MLR+3}], v{V_Y}
        ds_read_b128 v[{MLR+4}:{MLR+7}], v{V_Y} offset:16
        s_waitcnt lgkmcnt(0)
        v_max_f32 v{V_MW}, v{MLR}, v{MLR+2}
        v_max3_f32 v{V_MW}, v{V_MW}, v{MLR+4}, v{MLR+6}
        v_sub_f32 v{MLR}, v{MLR}, v{V_MW}
        v_sub_f32 v{MLR+2}, v{MLR+2}, v{V_MW}
        v_sub_f32 v{MLR+4}, v{MLR+4}, v{V_MW}
        v_sub_f32 v{MLR+6}, v{MLR+6}, v{V_MW}
        v_sub_f32 v{V_F}, v{V_M}, v{V_MW}
        v_exp_f32 v{MLR}, v{MLR}
        v_exp_f32 v{MLR+2}, v{MLR+2}
        v_exp_f32 v{MLR+4}, v{MLR+4}
        v_exp_f32 v{MLR+6}, v{MLR+6}
        v_exp_f32 v{V_F}, v{V_F}
        v_mul_f32 v{V_LW}, v{MLR}, v{MLR+1}
        v_fmac_f32 v{V_LW}, v{MLR+2}, v{MLR+3}
        v_fmac_f32 v{V_LW}, v{MLR+4}, v{MLR+5}
        v_fmac_f32 v{V_LW}, v{MLR+6}, v{MLR+7}
        """)
        def vconsume(jj, waitn, pre=None, post=None):
            preg, b = V_S + (jj & 3), jj >> 2
            a(f"s_waitcnt vmcnt({waitn})")
            if pre: pre()
            a(f"v_mov_b32_dpp v{V_PB}, v{preg} row_newbcast:{4*b} row_mask:0xf bank_mask:0xf")
            for e in range(4):
                a(f"v_lshlrev_b32 v{V_U+2*e}, 16, {ring(jj,e)}")
                a(f"v_and_b32 v{V_U+2*e+1}, s{S_MSK}, {ring(jj,e)}")
            if post: post()
            for e in range(0, 8, 2):
                a(f"v_pk_fma_f32 v[{V_ACC+e}:{V_ACC+e+1}], v[{V_U+e}:{V_U+e+1}], v[{V_PB}:{V_PB+1}], v[{V_ACC+e}:{V_ACC+e+1}] op_sel_hi:[1,0,1]")
        jtk = 16 - xoff
        a.label("L_vloop")
        for jj in range(16):
            def post(jj=jj):
                step(jj); ld(jj, S_NX)
                if jj == jtk:
                    a(f"""
                    s_cmp_lg_u32 s{S_G}, 2
                    s_cbranch_scc1 L_notk{tag}
                    s_cmp_lg_u32 s{S_WAVE}, 0
                    s_cbranch_scc1 L_notk{tag}
                    s_lshl_b32 s{S_T0}, s{S_HEAD}, 2
                    v_mov_b32 v{V_Y}, s{S_T0}
                    v_mov_b32 v{V_Z}, 1
                    v_mov_b32 v{V_TK}, -1
                    s_mov_b64 exec, 1
                    global_atomic_add v{V_TK}, v{V_Y}, v{V_Z}, s[12:13] sc0
                    s_mov_b64 exec, -1
                    """)
                    a.label(f"L_notk{tag}")
            vconsume(jj, 15, post=post)
        a(f"s_xor_b32 s{S_STEP}, s{S_STEP}, s{S_TOG}")
        a(f"s_add_u32 s{S_G}, s{S_G}, 1")
        for i in range(12): a(f"v_mov_b32 v{V_S+i}, v{V_S+4+i}")
        a(f"""
        s_cmp_lt_u32 s{S_G}, 3
        s_cbranch_scc1 L_vloop
        """)
        for jj in range(jtk + 1): vconsume(jj, 15 - jj)
        a(f"""
        s_mov_b32 s{S_TK}, 0
        s_cmp_lg_u32 s{S_WAVE}, 0
        s_cbranch_scc1 L_rest{tag}
        v_readfirstlane_b32 s{S_TK}, v{V_TK}
        s_nop 0
        s_cmp_lg_u32 s{S_TK}, -1
        s_cbranch_scc1 L_tkok{tag}
        s_waitcnt vmcnt(0)
        v_readfirstlane_b32 s{S_TK}, v{V_TK}
        s_nop 0
        """)
        a.label(f"L_tkok{tag}")
        a(f"""
        s_cmp_lg_u32 s{S_TK}, {S-1}
        s_cbranch_scc1 L_rest{tag}
        """)
        poll_issue()
        for jj in range(jtk + 1, 16):
            last = jj == 15
            vconsume(jj, 15 - jj + 3, pre=(lambda: (stamp(8), poll_issue(V_P2))) if last else None)
        a("s_branch L_vdone")
        a.label(f"L_rest{tag}")
        for jj in range(jtk + 1, 16):
            vconsume(jj, 15 - jj, pre=(lambda: stamp(8)) if jj == 15 else None)
    if roll:
        rolledbody()
    elif flex:
        assert not param and skewaddr >= 0
        assert all(not (cols[n] >> skewaddr & 1) for n in names if n[0] in "rjw"), "skew address bit must be constant per workgroup"
        cand = []
        for delta in range(1, 1 << nx):
            D = 0
            for k in range(nx):
                if delta >> k & 1: D ^= cols[f"x{k}"]
            if (D >> 20) & 63 == 0 and D >> skewaddr & 1: cand.append(D & 0x3ffffff)
        assert cand
        a(f"s_xor_b32 s{S_BP}, s{S_B}, {cand[0]}")
        a(f"s_bitcmp0_b32 s{S_B}, {skewaddr}")
        a("s_cselect_b64 vcc, -1, 0")
        flexbody(flex)
    elif skew == 0 and dup:
        a(f"s_bitcmp1_b32 s{S_B}, 11")
        a("s_cbranch_scc1 L_odd")
        body([(True, j) for j in range(NL)], "e")
        a("s_branch L_vdone")
        a.label("L_odd")
        body([(True, j) for j in range(NL)], "o")
    elif skew == 0:
        body([(True, j) for j in range(NL)], "a")
    else:
        if skewaddr >= 0:
            assert not param
            assert all(not (cols[n] >> skewaddr & 1) for n in names if n[0] in "rjw"), "skew address bit must be constant per workgroup"
            cand = []
            for delta in range(1, 1 << nx):
                D = 0
                for k in range(nx):
                    if delta >> k & 1: D ^= cols[f"x{k}"]
                if (D >> 20) & 63 == 0 and D >> skewaddr & 1: cand.append(D & 0x3ffffff)
            assert cand
            a(f"s_xor_b32 s{S_BP}, s{S_B}, {cand[0]}")
            a(f"s_bitcmp1_b32 s{S_B}, {skewaddr}")
        elif param:
            a(f"s_xor_b32 s{S_BP}, s{S_B}, {pr(2+nj+nw+skewbit)}")
            a(f"s_and_b32 s{S_BP}, s{S_BP}, 0x3ffffff")
            a(f"s_bitcmp1_b32 s2, {skewbit}")
        else:
            assert (cols[f'x{skewbit}'] >> 20) & 63 == 0, "skew bit must be a split bit"
            a(f"s_xor_b32 s{S_BP}, s{S_B}, {cols[f'x{skewbit}'] & 0x3ffffff}")
            a(f"s_bitcmp1_b32 s2, {skewbit}")
        a("s_cbranch_scc1 L_odd")
        body([(True, j) for j in range(NL)] + [(False, j) for j in range(NL - skew, NL)], "e")
        a("s_branch L_vdone")
        a.label("L_odd")
        body([(True, j) for j in range(NL - skew)], "o")
    a.label("L_vdone")
    a("s_nop 1")
    for e in range(4): a(f"v_permlane32_swap_b32 v{V_ACC+e}, v{V_ACC+e+4}")
    a("s_nop 0")
    for e in range(4): a(f"v_add_f32 v{V_ACC+e}, v{V_ACC+e}, v{V_ACC+e+4}")
    a("s_nop 1")
    for e in range(2): a(f"v_permlane16_swap_b32 v{V_ACC+e}, v{V_ACC+e+2}")
    a("s_nop 0")
    AC = V_U
    a(f"""
    v_add_f32 v{AC}, v{V_ACC}, v{V_ACC+2}
    v_add_f32 v{AC+1}, v{V_ACC+1}, v{V_ACC+3}
    v_mul_f32 v{AC}, v{AC}, v{V_F}
    v_mul_f32 v{AC+1}, v{AC+1}, v{V_F}
    ds_write_b64 v{V_LA}, v[{AC}:{AC+1}]
    s_cmp_lg_u32 s{S_WAVE}, 0
    s_cbranch_scc1 L_bar_exit
    v_lshlrev_b32 v{V_X}, 3, v0
    s_cmp_lg_u32 s{S_TK}, {S-1}
    s_cbranch_scc1 L_producer
    """)
    T = V_T
    B = V_RING
    def check(base, target):
        a(f"""
        v_cmp_ne_u32 vcc, 0, v{base+3}
        v_cmp_ne_u32 s[4:5], 0, v{base+7}
        v_cmp_ne_u32 s[6:7], 0, v{base+11}
        s_nop 1
        s_and_b64 vcc, vcc, s[4:5]
        s_and_b64 vcc, vcc, s[6:7]
        s_cmp_eq_u64 vcc, -1
        s_cbranch_scc1 {target}
        """)
    def factors(P):
        a(f"""
        v_max_f32 v{T}, v{V_MW}, v{P+2}
        v_max3_f32 v{T}, v{T}, v{P+6}, v{P+10}
        v_sub_f32 v{T+1}, v{V_MW}, v{T}
        v_sub_f32 v{T+2}, v{P+2}, v{T}
        v_sub_f32 v{T+3}, v{P+6}, v{T}
        v_sub_f32 v{T+4}, v{P+10}, v{T}
        v_exp_f32 v{T+1}, v{T+1}
        v_exp_f32 v{T+2}, v{T+2}
        v_exp_f32 v{T+3}, v{T+3}
        v_exp_f32 v{T+4}, v{T+4}
        s_lshl_b32 s{S_T0}, s{S_HEAD}, 8
        v_mul_f32 v{T+5}, v{T+1}, v{V_LW}
        v_mul_f32 v{T+6}, v{T+2}, v{P+3}
        v_mul_f32 v{T+7}, v{T+3}, v{P+7}
        v_mul_f32 v{T+8}, v{T+4}, v{P+11}
        v_add_f32 v{T+5}, v{T+5}, v{T+6}
        v_add_f32 v{T+7}, v{T+7}, v{T+8}
        v_mul_f32 v{T+9}, v{T+2}, v{P}
        v_add_f32 v{T+5}, v{T+5}, v{T+7}
        v_mul_f32 v{T+10}, v{T+2}, v{P+1}
        v_rcp_f32 v{T+5}, v{T+5}
        v_mul_f32 v{T+11}, v{T+3}, v{P+4}
        v_mul_f32 v{T+12}, v{T+3}, v{P+5}
        v_mul_f32 v{T+13}, v{T+4}, v{P+8}
        v_mul_f32 v{T+14}, v{T+4}, v{P+9}
        v_add_u32 v{V_Z}, s{S_T0}, v{V_OA}
        v_add_f32 v{T+11}, v{T+11}, v{T+13}
        v_add_f32 v{T+12}, v{T+12}, v{T+14}
        """)
    def own_sum():
        for w in range(W): a(f"ds_read_b64 v[{B+2*w}:{B+2*w+1}], v{V_X} offset:{512*w}")
    def own_sum2():
        a(f"""
        s_waitcnt lgkmcnt(2)
        v_add_f32 v{B}, v{B}, v{B+2}
        v_add_f32 v{B+1}, v{B+1}, v{B+3}
        s_waitcnt lgkmcnt(0)
        v_add_f32 v{B+4}, v{B+4}, v{B+6}
        v_add_f32 v{B+5}, v{B+5}, v{B+7}
        v_add_f32 v{B}, v{B}, v{B+4}
        v_add_f32 v{B+1}, v{B+1}, v{B+5}
        """)
    def final():
        a(f"""
        v_mul_f32 v{B}, v{T+1}, v{B}
        v_mul_f32 v{B+1}, v{T+1}, v{B+1}
        v_add_f32 v{B}, v{B}, v{T+9}
        v_add_f32 v{B+1}, v{B+1}, v{T+10}
        v_add_f32 v{B}, v{B}, v{T+11}
        v_add_f32 v{B+1}, v{B+1}, v{T+12}
        v_mul_f32 v{B}, v{B}, v{T+5}
        v_mul_f32 v{B+1}, v{B+1}, v{T+5}
        v_cvt_pk_bf16_f32 v{T+6}, v{B}, v{B+1}
        global_store_dword v{V_Z}, v{T+6}, s[10:11]
        """)
        stamp(13)
        if diag: a(f"s_add_u32 s{32+2*12}, s{S_CNT}, 1")
        a("s_branch L_end")
    a(f"s_mov_b32 s{S_CNT}, 0")
    a("s_waitcnt vmcnt(3)")
    check(V_P, "L_fast")
    a(f"""
    s_waitcnt lgkmcnt(0)
    s_barrier
    """)
    stamp(10)
    own_sum()
    poll_issue(V_P)
    own_sum2()
    a.label("L_poll")
    a("s_waitcnt vmcnt(3)")
    check(V_P2, "L_finB")
    a(f"""
    s_add_u32 s{S_CNT}, s{S_CNT}, 1
    s_cmp_ge_u32 s{S_CNT}, {spinmax}
    s_cbranch_scc1 L_finB
    """)
    poll_issue(V_P2)
    a("s_waitcnt vmcnt(3)")
    check(V_P, "L_finA")
    poll_issue(V_P)
    a("s_branch L_poll")
    a.label("L_finB")
    stamp(11)
    factors(V_P2)
    final()
    a.label("L_finA")
    stamp(11)
    factors(V_P)
    final()
    a.label("L_fast")
    stamp(11)
    factors(V_P)
    a(f"""
    s_waitcnt lgkmcnt(0)
    s_barrier
    """)
    stamp(10)
    own_sum()
    own_sum2()
    final()
    a.label("L_producer")
    a(f"""
    s_waitcnt lgkmcnt(0)
    s_barrier
    """)
    stamp(10)
    B4 = (B + 3) // 4 * 4
    for w in range(W): a(f"ds_read_b64 v[{B+2*w}:{B+2*w+1}], v{V_X} offset:{512*w}")
    G = V_P
    a(f"""
    v_mov_b32 v{G+2}, v{V_MW}
    v_mov_b32 v{G+3}, v{V_LW}
    s_waitcnt lgkmcnt(2)
    v_add_f32 v{B}, v{B}, v{B+2}
    v_add_f32 v{B+1}, v{B+1}, v{B+3}
    s_waitcnt lgkmcnt(0)
    v_add_f32 v{B+4}, v{B+4}, v{B+6}
    v_add_f32 v{B+5}, v{B+5}, v{B+7}
    v_add_f32 v{G}, v{B}, v{B+4}
    v_add_f32 v{G+1}, v{B+1}, v{B+5}
    global_store_dwordx4 v{V_SA}, v[{G}:{G+3}], s[14:15] sc1
    """)
    stamp(13)
    a("s_branch L_end")
    a.label("L_bar_exit")
    a(f"""
    s_waitcnt lgkmcnt(0)
    s_barrier
    """)
    stamp(10)
    a.label("L_end")
    if diag:
        a("s_waitcnt vmcnt(0)")
        stamp(15)
        a("s_waitcnt lgkmcnt(0)")
        a("s_mov_b64 exec, -1")
        a(f"s_add_u32 s44, s{S_HEAD}, 1")
        a(f"s_add_u32 s46, s{S_TK}, 1")
        a("s_getreg_b32 s60, hwreg(HW_REG_XCC_ID)")
        a("s_getreg_b32 s3, hwreg(HW_REG_HW_ID)")
        a("s_lshl_b32 s3, s3, 4")
        a("s_and_b32 s60, s60, 15")
        a("s_or_b32 s60, s60, s3")
        for i in range(NST): a(f"v_writelane_b32 v2, s{32+2*i}, {i}")
        a(f"""
        s_mul_i32 s3, s2, {W}
        s_add_u32 s3, s3, s{S_WAVE}
        s_lshl_b32 s3, s3, 6
        s_add_u32 s3, s3, 0x1000000
        v_and_b32 v3, 63, v0
        v_lshlrev_b32 v3, 2, v3
        v_add_u32 v3, s3, v3
        s_mov_b64 exec, 0xffff
        global_store_dword v3, v2, s[14:15]
        """)
    a.label("L_exit")
    a("s_endpgm")
    lds = W * 512 + W * 8
    nv = (NV + 7) // 8 * 8
    out = HEADER + f"; @launch grid=({NWG},1,1) block=({64*W},1,1) lds={lds}\n" + NOTES
    out += f""".amdgcn_target "amdgcn-amd-amdhsa--gfx950"
.text
.globl {NAME}_kernel
.p2align 8
.type {NAME}_kernel,@function
{NAME}_kernel:
"""
    out += a.text()
    out += f""".section .rodata,"a"
.p2align 6
.amdhsa_kernel {NAME}_kernel
  .amdhsa_next_free_vgpr {nv}
  .amdhsa_next_free_sgpr 100
  .amdhsa_accum_offset {nv}
  .amdhsa_group_segment_fixed_size 0
  .amdhsa_kernarg_size 48
  .amdhsa_user_sgpr_count 2
  .amdhsa_user_sgpr_kernarg_segment_ptr 1
  .amdhsa_system_sgpr_workgroup_id_x 1
  .amdhsa_float_denorm_mode_32 3
.end_amdhsa_kernel
"""
    return out

if __name__ == "__main__":
    p = argparse.ArgumentParser()
    p.add_argument("-R", type=int, default=16)
    p.add_argument("--pol", default="nt")
    p.add_argument("--diag", action="store_true")
    p.add_argument("--param", action="store_true")
    p.add_argument("--spec", default="r0,r1,j0,j1,w0,j2,w1,j3,j4,j5,x0,x1,x2,x3,x4,x5,x6,x7")
    p.add_argument("--xoff", type=int, default=4)
    p.add_argument("--midbar", type=int, default=4)
    p.add_argument("--skew", type=int, default=0)
    p.add_argument("--hspec", default="")
    p.add_argument("--skewaddr", type=int, default=-1)
    p.add_argument("--dup", action="store_true")
    p.add_argument("--cpf", type=int, default=0)
    p.add_argument("--nopk", action="store_true")
    p.add_argument("--qpos", type=int, default=0)
    p.add_argument("--flex", type=int, default=0)
    p.add_argument("--roll", action="store_true")
    p.add_argument("-o", default="-")
    args = p.parse_args()
    pol = (" " + args.pol.replace("+", " ")) if args.pol else ""
    txt = gen(args.R, pol, args.diag, args.spec, args.param, args.xoff, midbar=args.midbar, skew=args.skew, hspec=args.hspec, skewaddr=args.skewaddr, dup=args.dup, cpf=args.cpf, pk=not args.nopk, qpos=args.qpos, flex=args.flex, roll=args.roll)
    if args.o == "-": sys.stdout.write(txt)
    else: open(args.o, "w").write(txt)
```
